```python
import torch

def _softmax(x, axis=-1):
    return torch.softmax(x, dim=axis)
def _gelu(x):
    return torch.nn.functional.gelu(x, approximate="tanh")
def _silu(x):
    return torch.nn.functional.silu(x)
def _sigmoid(x):
    return torch.sigmoid(x)
def _layernorm(x, axis=-1, eps=1e-5):
    m = x.mean(dim=axis, keepdim=True)
    v = x.var(dim=axis, keepdim=True, unbiased=False)
    return (x - m) / torch.sqrt(v + eps)
def _scatter_add(tgt, idx, src, axis=0):
    return tgt.clone().index_add_(axis, idx, src)
def _segment_sum(src, seg, n):
    out = torch.zeros((n,) + src.shape[1:], dtype=src.dtype)
    return out.index_add_(0, seg, src)
def _pad(x, pw):
    flat = tuple(v for pair in reversed(pw) for v in pair)
    return torch.nn.functional.pad(x, flat)

kernel_name = 'concat_heads__gqa_block_cached__gqa_block_cached__near_ridge'

def setup_inputs():

    _w = (lambda a: (lambda t: t.to(torch.bfloat16) if t.is_floating_point() else t)(torch.as_tensor(a)))
    def _A_setup():
        B, Sq, D = 8, 144, 640
        Hq, Hkv, Sk, Dh = 32, 32, 512, 192
        assert Hq % Hkv == 0, (Hq, Hkv)
        return {
            "x": _w((lambda *s: torch.randn(*s, dtype=torch.bfloat16) * 0.8)(B, Sq, D)),
            "k_cache": _w((lambda *s: torch.randn(*s, dtype=torch.bfloat16) * 0.8)(B, Hkv, Sk, Dh)),
            "v_cache": _w((lambda *s: torch.randn(*s, dtype=torch.bfloat16) * 0.05)(B, Hkv, Sk, Dh)),
            "wq": _w((lambda *s: torch.randn(*s, dtype=torch.bfloat16) * 0.8)(D, Hq * Dh) * (D ** -0.5)),
            "wo": _w((lambda *s: torch.randn(*s, dtype=torch.bfloat16) * 0.05)(Hq * Dh, D) * ((Hq * Dh) ** -0.5)),
        }
    _A_in = _A_setup()

    def _B_setup():
        B, Sq, D = 8, 144, 640
        Hq, Hkv, Sk, Dh = 32, 32, 512, 192
        assert Hq % Hkv == 0, (Hq, Hkv)
        return {
            "x": _w((lambda *s: torch.randn(*s, dtype=torch.bfloat16) * 0.8)(B, Sq, D)),
            "k_cache": _w((lambda *s: torch.randn(*s, dtype=torch.bfloat16) * 0.8)(B, Hkv, Sk, Dh)),
            "v_cache": _w((lambda *s: torch.randn(*s, dtype=torch.bfloat16) * 0.05)(B, Hkv, Sk, Dh)),
            "wq": _w((lambda *s: torch.randn(*s, dtype=torch.bfloat16) * 0.8)(D, Hq * Dh) * (D ** -0.5)),
            "wo": _w((lambda *s: torch.randn(*s, dtype=torch.bfloat16) * 0.05)(Hq * Dh, D) * ((Hq * Dh) ** -0.5)),
        }
    _B_in = _B_setup()

    return {
        "A_x": _A_in["x"],
        "A_k_cache": _A_in["k_cache"],
        "A_v_cache": _A_in["v_cache"],
        "A_wq": _A_in["wq"],
        "A_wo": _A_in["wo"],
        "B_x": _B_in["x"],
        "B_k_cache": _B_in["k_cache"],
        "B_v_cache": _B_in["v_cache"],
        "B_wq": _B_in["wq"],
        "B_wo": _B_in["wo"],
    }

def reference(A_x, A_k_cache, A_v_cache, A_wq, A_wo, B_x, B_k_cache, B_v_cache, B_wq, B_wo):
    def _A_ref(x, k_cache, v_cache, wq, wo):
        B, Sq, D = x.shape
        Hq, Dh = 32, 192
        Hkv = k_cache.shape[1]
        rep = Hq // Hkv
        q = (lambda x, *d: x.permute(*d))((x @ wq).reshape(B, Sq, Hq, Dh), 0, 2, 1, 3)
        k = (lambda x, n, axis: torch.repeat_interleave(x, n, dim=axis))(k_cache, rep, axis=1)
        v = (lambda x, n, axis: torch.repeat_interleave(x, n, dim=axis))(v_cache, rep, axis=1)
        scores = torch.einsum("bhqd,bhkd->bhqk", q, k) * (Dh ** -0.5)
        p = _softmax(scores, axis=-1)
        o = torch.einsum("bhqk,bhkd->bhqd", p, v)
        return (lambda x, *d: x.permute(*d))(o, 0, 2, 1, 3).reshape(B, Sq, Hq * Dh) @ wo

    def _B_ref(x, k_cache, v_cache, wq, wo):
        B, Sq, D = x.shape
        Hq, Dh = 32, 192
        Hkv = k_cache.shape[1]
        rep = Hq // Hkv
        q = (lambda x, *d: x.permute(*d))((x @ wq).reshape(B, Sq, Hq, Dh), 0, 2, 1, 3)
        k = (lambda x, n, axis: torch.repeat_interleave(x, n, dim=axis))(k_cache, rep, axis=1)
        v = (lambda x, n, axis: torch.repeat_interleave(x, n, dim=axis))(v_cache, rep, axis=1)
        scores = torch.einsum("bhqd,bhkd->bhqk", q, k) * (Dh ** -0.5)
        p = _softmax(scores, axis=-1)
        o = torch.einsum("bhqk,bhkd->bhqd", p, v)
        return (lambda x, *d: x.permute(*d))(o, 0, 2, 1, 3).reshape(B, Sq, Hq * Dh) @ wo

    a = _A_ref(A_x, A_k_cache, A_v_cache, A_wq, A_wo)
    b = _B_ref(B_x, B_k_cache, B_v_cache, B_wq, B_wo)
    return torch.concatenate([a, b], axis=-1)
```

```python
import re
import numpy as np

def rng(p, a, n):
    return [f"{p}{a+i}" for i in range(n)]
def R(p, a, n=1):
    return f"{p}{a}" if n == 1 else f"{p}[{a}:{a+n-1}]"
def expand(op):
    op = op.strip()
    m = re.fullmatch(r"([vas])\[(\d+):(\d+)\]", op)
    if m: return rng(m.group(1), int(m.group(2)), int(m.group(3)) - int(m.group(2)) + 1)
    m = re.fullmatch(r"([vas])(\d+)", op)
    if m: return [op]
    if op in ("m0", "vcc", "exec"): return [op]
    return []

class Ins:
    __slots__ = ("t", "k", "w", "r", "passes", "c", "opt")
    def __init__(s, t, k, w=(), r=(), passes=0, c=()):
        s.t, s.k, s.w, s.r, s.passes, s.c = t, k, list(w), list(r), passes, list(c)
        s.opt = False

TRANS = ("v_exp_f32", "v_rcp_f32", "v_log_f32", "v_rsq_f32")
def parse(t):
    t = t.strip()
    if t.endswith(":"): return Ins(t, "label")
    mn, _, rest = t.partition(" ")
    ops = [o.strip() for o in rest.split(",")] if rest else []
    ops = [o.split(" ")[0] for o in ops]
    ops = [o[1:] if re.match(r"-[vas]", o) else o for o in ops]
    if mn.startswith("v_mfma"):
        p = 8 if "32x32" in mn else 4
        return Ins(t, "mfma", expand(ops[0]), expand(ops[1]) + expand(ops[2]), p, expand(ops[3]))
    if mn.startswith("ds_read"):
        return Ins(t, "ds", expand(ops[0]), expand(ops[1]))
    if mn.startswith("ds_write"):
        return Ins(t, "ds", [], expand(ops[0]) + expand(ops[1]))
    if mn.startswith("buffer_load"):
        if " lds" in t: return Ins(t, "dma", [], sum((expand(o) for o in ops), []) + ["m0"])
        return Ins(t, "vmem", expand(ops[0]), sum((expand(o) for o in ops[1:]), []))
    if mn.startswith("buffer_store"):
        return Ins(t, "store", [], sum((expand(o) for o in ops), []), c=expand(ops[0]))
    if mn.startswith("global_load"):
        return Ins(t, "vmem", expand(ops[0]), sum((expand(o) for o in ops[1:]), []))
    if mn.startswith("v_permlane"):
        return Ins(t, "perm", expand(ops[0]) + expand(ops[1]), expand(ops[0]) + expand(ops[1]))
    if mn.startswith("v_readfirstlane"):
        return Ins(t, "rfl", expand(ops[0]), expand(ops[1]))
    if mn.startswith("v_cmp"):
        return Ins(t, "valu", expand(ops[0]), sum((expand(o) for o in ops[1:]), []))
    if mn.startswith("v_"):
        k = "trans" if mn in TRANS else "valu"
        r = sum((expand(o) for o in ops[1:]), [])
        return Ins(t, k, expand(ops[0]), r)
    if mn == "s_nop": return Ins(t, "nop", passes=int(ops[0]) + 1)
    if mn.startswith("s_cbranch") or mn == "s_branch": return Ins(t, "branch")
    if mn in ("s_waitcnt", "s_barrier", "s_endpgm", "s_setprio"): return Ins(t, "sctl")
    if mn.startswith("s_cmp"): return Ins(t, "salu", [], sum((expand(o) for o in ops), []))
    if mn.startswith("s_"):
        return Ins(t, "salu", expand(ops[0]) if ops else [], sum((expand(o) for o in ops[1:]), []))
    raise ValueError(t)

VAL = ("valu", "trans", "perm", "rfl")
def need_states(prod, cons):
    n = 0
    pw, cr, cw = set(prod.w), set(cons.r), set(cons.w)
    if prod.k == "mfma":
        big = 12 if prod.passes == 8 else 8
        if cons.k == "mfma":
            if pw & cr: n = max(n, big)
            if pw & set(cons.c):
                if not (cons.c == prod.w and cons.passes == prod.passes): n = max(n, big - 2)
            if (pw & cw) and not (cons.w == prod.w and cons.passes == prod.passes): n = max(n, big)
        elif cons.k in VAL or cons.k in ("ds", "vmem", "store", "dma"):
            if pw & (cr | cw): n = max(n, big)
        if cons.k in VAL and (set(prod.c) & cw): n = max(n, 7 if prod.passes == 8 else 3)
    if prod.k in VAL:
        if cons.k == "mfma" and (pw & (cr | set(cons.c))): n = max(n, 2)
        if cons.k == "perm" and (pw & cr): n = max(n, 2)
        if cons.k == "rfl" and (pw & cr): n = max(n, 1)
        if prod.k == "trans" and cons.k in VAL and cons.k != "trans" and (pw & cr): n = max(n, 1)
        sw = {x for x in pw if x[0] == "s" or x == "vcc"}
        if sw & cr:
            if cons.k in ("vmem", "store", "dma"): n = max(n, 5)
            elif cons.k in VAL: n = max(n, 2)
    if prod.k == "store" and cons.k in VAL and (set(prod.c) & cw): n = max(n, 2)
    if prod.k == "salu" and "m0" in pw and cons.k == "dma": n = max(n, 1)
    return n

def pad_hazards(seq, hist=None):
    out = list(hist or [])
    base = len(out)
    for ins in seq:
        if ins.k not in ("label", "nop"):
            dist, need = 0, 0
            for p in reversed(out):
                if p.k == "label": continue
                if dist >= 13: break
                q = need_states(p, ins) - dist
                if q > need: need = q
                dist += 0 if p.opt else (p.passes if p.k == "nop" else 1)
            while need > 0:
                m = min(need, 8)
                out.append(parse(f"s_nop {m-1}")); need -= m
        out.append(ins)
    return out[base:]

class Lane:
    def __init__(s, g): s.g = g; s.val = {}
    def _v(s, x):
        if isinstance(x, int): return np.full(256, x, dtype=np.int64)
        return s.val[x]
    def _t(s, x): return str(x) if not isinstance(x, int) else (str(x) if -16 <= x <= 64 else hex(x))
    def op(s, mn, d, *a):
        s.g.e(f"{mn} {d}, " + ", ".join(s._t(x) for x in a))
        v = [s._v(x) for x in a]
        f = {"v_and_b32": lambda: v[0] & v[1], "v_or_b32": lambda: v[0] | v[1], "v_xor_b32": lambda: v[0] ^ v[1],
             "v_add_u32": lambda: v[0] + v[1], "v_sub_u32": lambda: v[0] - v[1],
             "v_lshlrev_b32": lambda: v[1] << v[0], "v_lshrrev_b32": lambda: v[1] >> v[0],
             "v_mul_u32_u24": lambda: v[0] * v[1], "v_mad_u32_u24": lambda: v[0] * v[1] + v[2],
             "v_bfe_u32": lambda: (v[0] >> v[1]) & ((1 << v[2]) - 1),
             "v_lshl_add_u32": lambda: (v[0] << v[1]) + v[2], "v_lshl_or_b32": lambda: (v[0] << v[1]) | v[2],
             "v_mov_b32": lambda: v[0]}[mn]
        s.val[d] = f() & 0xffffffff
        return d
    def check(s, d, fn):
        exp = np.array([fn(t >> 6, t & 63) for t in range(256)], dtype=np.int64)
        assert (s.val[d] == exp).all(), (d, s.val[d][:80], exp[:80])

class Gen:
    def __init__(s):
        s.ins = []
        s.ds_n = 0; s.ds_done = 0; s.vm = []; s.opt = False
    def vm_n(s, tags):
        last = max(i for i, x in enumerate(s.vm) if x in tags)
        return len(s.vm) - 1 - last
    def e(s, t, tag=None):
        i = parse(t); i.opt = s.opt; s.ins.append(i)
        if i.k in ("dma", "vmem"): s.vm.append(tag)
        if s.opt: return None
        if i.k == "ds":
            s.ds_n += 1
            return s.ds_n
        if t.startswith("s_waitcnt"):
            m = re.search(r"lgkmcnt\((\d+)\)", t)
            if m: s.ds_done = max(s.ds_done, s.ds_n - int(m.group(1)))
        return None
    def need_ds(s, i):
        if i is None or i <= s.ds_done: return
        n = min(s.ds_n - i, 15)
        s.e(f"s_waitcnt lgkmcnt({n})")
    def mark(s): return len(s.ins)
```

```python
import sys, os, re, struct, math
sys.path.insert(0, os.path.dirname(os.path.abspath(__file__)))
from asmlib import *

P = dict(D=6, E=2, kv="nt", wq="", wo="", xp="", st="", stop=None, pref=1, name="k", T=8.0)
for a in sys.argv[1:]:
    k, v = a.split("=", 1)
    P[k] = type(P[k])(v) if isinstance(P[k], (int, float)) else v
D, E = P["D"], P["E"]
NAME = "concat_heads__gqa_block_cached__gqa_block_cached__near_ridge"
SLOT = 24576; RA = 147456; XB = RA + 12288; LDS = XB + 1024
def f(row): return (((row >> 1) & 1) << 2) | ((((row >> 2) ^ (row >> 3)) & 1) << 1) | ((row >> 2) & 1)
def fo(row): return ((row & 3) << 1) | (((row >> 3) & 1) << 3)
def fb(x): return hex(struct.unpack("<I", struct.pack("<f", x))[0])
CS = math.log2(math.e) / math.sqrt(192.0)

SX, SW, SK, SV, SO, SP, SDQ, SDP = 4, 8, 12, 16, 20, 24, 28, 32
sW, sW6, sW5, sR, sQB, sM, sOQ, sOP, sC, sT, sCS, sTH, sFL, sTAB, sT2, sCH, sST, sOX = 36, 37, 38, 39, 40, 42, 43, 44, 45, 46, 47, 48, 50, 52, 53, 54, 55, 56
def srd(b): return f"s[{b}:{b+3}]"
S0, S1, PT, OL, SL = 96, 128, 160, 176, 188
DV = 192; XV = 198; WA = 200; WL = 208; LB = 210
vM, vMC, vL, vAL, vCM, vML, vLL, vALL = range(214, 222)
PW, PR, XW, XR, RW, RR = range(222, 228)
TM = 228
SL2 = 240; XT = 244; XA = 246; vST = 248; T2 = 250
aQL, aXF, aKV, aLA, aFM, aFL, aPL, aST = 96, 120, 144, 150, 176, 224, 248, 174
KM, KL, VM_, VL = LB, LB + 1, LB + 2, LB + 3

g = Gen(); L = Lane(g)
e = g.e
BIG = "v_mfma_f32_32x32x16_bf16"; SML = "v_mfma_f32_16x16x32_bf16"

class Step:
    def __init__(s, name, tiles):
        s.name, s.tiles = name, tiles
        s.jobs = []; s.pre = []; s.fill = {}; s.label = None; s.tail = []; s.head = []
        s.nm = 0; s.nl = 0
    def fm(s): b = aFM + 4 * (s.nm % 12); s.nm += 1; return b
    def fl(s): b = aFL + 4 * (s.nl % 6); s.nl += 1; return b
    def job(s, reads, mf, buf): s.jobs.append((reads, mf, buf))
    def spread(s, a, b, items):
        n = len(items)
        for i, it in enumerate(items): s.fill.setdefault(a + (i * (b - a)) // n, []).append(it)
def do(it):
    if callable(it): it()
    else: e(it)
def merge(m, l, pos):
    out = []; m = list(m); l = list(l)
    for i in range(len(m) + len(l)): out.append(l.pop(0) if i in pos else m.pop(0))
    return out
PAT_STD = (4, 9, 14, 19, 24, 29); PAT_EARLY = (3, 6, 9, 12, 15, 18); PAT_LATE = (13, 16, 19, 22, 25, 28)
marks = []
def boundary(st):
    for it in st.tail:
        if not (P["stop"] and "cbranch" in it): do(it)
    if st.label: e(f"@{st.label}:")
    if not st.jobs: return
    for it in st.pre: do(it)
    e(f"s_waitcnt vmcnt({g.vm_n(st.tiles)}) lgkmcnt(0)"); e("s_barrier")
def run(steps):
    jobs = [(si, ji) for si, st in enumerate(steps) for ji in range(len(st.jobs))]
    start = [0]
    for st in steps: start.append(start[-1] + len(st.jobs))
    opened = 0; predone = 0
    rp = start[1]; free = {j[2]: n for n, j in enumerate(steps[0].jobs)}; ids = {n: None for n in range(rp)}
    for i in range(len(jobs)):
        nxt = opened + 1
        if nxt < len(steps):
            if i >= start[nxt] - (D - E):
                assert rp >= start[nxt], "reads lag"
                boundary(steps[nxt]); opened = nxt
        n = 0
        while rp < len(jobs) and rp <= i + D and jobs[rp][0] <= opened and n < 2:
            si, ji = jobs[rp]; reads, mf, buf = steps[si].jobs[ji]
            if free.get(buf, -1) >= i: break
            for r in reads:
                x = e(r)
                if x: ids[rp] = x
            free[buf] = rp; rp += 1; n += 1
        for si in range(len(steps)):
            if si <= opened:
                for it in steps[si].fill.pop(i - start[si], []): do(it)
        if i >= 0:
            si, ji = jobs[i]
            assert rp > i
            if ji == 0:
                for it in steps[si].head: do(it)
            g.need_ds(ids[i]); e(steps[si].jobs[ji][1])
            if P["stop"] == steps[si].name and ji == len(steps[si].jobs) - 1: return True
    for st in steps: assert not st.fill, (st.name, st.fill.keys())
    return False
class DSid:
    def rd(s, t): return lambda: setattr(s, "i", e(t))
    def need(s): return lambda: g.need_ds(s.i)

def dma(tag, sr, so, pol, vo=DV, base=sM, add=0):
    out = []
    for k in range(6):
        out.append(f"s_add_u32 m0, s{base}, {add + 1024 * k}")
        out.append(lambda k=k: e(f"buffer_load_dwordx4 v{vo+k}, {srd(sr)}, s{so} offen {pol} lds".replace("  ", " "), tag))
    return out
def dma_x(tag, base, add=0):
    out = []
    for k in range(5):
        out.append(f"s_add_u32 m0, s{base}, {add + 1024 * k}")
        out.append(f"s_add_u32 s{sT}, s{sOX}, {20480 * (k >> 1)}")
        out.append(lambda k=k: e(f"buffer_load_dwordx4 v{XV+(k&1)}, {srd(SX)}, s{sT} offen {P['xp']} lds".replace("  ", " "), tag))
    return out
def adv():
    return [f"s_add_u32 s{sM}, s{sR}, s{sW6}", f"s_add_u32 s{sR}, s{sR}, {SLOT}",
            f"s_cmp_eq_u32 s{sR}, {6*SLOT}", f"s_cselect_b32 s{sR}, 0, s{sR}"]
def addr(dst, base, xors):
    return [f"v_add_u32 v{dst}, s{sR}, v{base}"] + [f"v_xor_b32 v{dst+1+i}, {x}, v{dst}" for i, x in enumerate(xors)]
def tr(d, a, o): return f"ds_read_b64_tr_b16 a[{d}:{d+1}], v{a} offset:{o}"
def b128(d, a, o): return f"ds_read_b128 a[{d}:{d+3}], v{a} offset:{o}"
def left_tr_jobs(st, nu, acc, accp, bfr, zero=False):
    out = []
    for u in range(nu):
        for dt in range(3):
            b = st.fl(); c = R(accp, acc + 4 * dt, 4)
            out.append(([tr(b + 2 * jj, WL + jj, 12288 * u + 1536 * jj + 128 * dt) for jj in (0, 1)],
                        f"{SML} {c}, a[{b}:{b+3}], a[{bfr+4*u}:{bfr+4*u+3}], {'0' if zero and u == 0 else c}", b))
    return out

WMB, WLB = TM + 10, VL
def stepW(T, hd):
    st = Step(f"{'AB'[hd]}{T}", [3 * T, 3 * T + 1] if hd == 0 else [3 * T + 2])
    if hd == 0:
        st.pre = [f"s_xor_b32 s{sQB}, s{sQB}, {3*SLOT}", f"s_add_u32 s{sR}, s{sQB}, {SLOT}",
                  f"v_add_u32 v{XA}, s{sQB}, v{TM+8}", f"v_add_u32 v{XA+1}, s{sQB}, v{TM+9}"]
    else: st.pre = [f"s_add_u32 s{sR}, s{sQB}, {2*SLOT}"]
    st.pre += addr(WA, WMB, [48, 64, 112]) + addr(WL, WLB, [48])
    m = []
    for s in range(4):
        for dt in range(6):
            b = st.fm(); rd = []
            if hd == 0 and dt == 0:
                rd = ([f"v_xor_b32 v{XT}, {32*s}, v{XA}"] if s else []) + [b128(aXF + 4 * s, XT if s else XA, 0)]
            rd += [tr(b + 2 * jj, WA + jj + 2 * (dt & 1), 6144 * s + 1536 * jj + 128 * (dt >> 1)) for jj in (0, 1)]
            c = R("v", 96 * hd + 16 * dt, 16)
            m.append((rd, f"{BIG} {c}, a[{b}:{b+3}], a[{aXF+4*s}:{aXF+4*s+3}], {c}", b))
    l = left_tr_jobs(st, 2, aLA + 12 * hd, "a", aXF + 16)
    if hd == 0:
        l[0] = ([b128(aXF + 16, XA + 1, 0)] + l[0][0],) + l[0][1:]
        l[3] = ([f"v_xor_b32 v{XT+1}, 64, v{XA+1}", b128(aXF + 20, XT + 1, 0)] + l[3][0],) + l[3][1:]
    st.jobs = merge(m, l, PAT_STD)
    kvp = P["kv"]
    if hd == 0:
        t = 3 * T + 5
        pre = [f"s_xor_b32 s{sM}, s{sQB}, {3*SLOT}", f"s_add_u32 s{sM}, s{sM}, s{sW6}"]
        if T <= 8: st.spread(-3, 20, pre + [f"s_add_u32 s{sOP}, s{sOP}, {64*12288}"] + dma(t, SW, sOP, P["wq"], add=2 * SLOT))
        else: st.spread(-3, 20, pre + [f"s_mov_b32 s{sOQ}, 0"] + dma(t, SV, sOQ, kvp, add=2 * SLOT))
    else:
        if T <= 7:
            it = [f"s_add_u32 s{sM}, s{sQB}, s{sW5}", f"s_add_u32 s{sOX}, s{sOX}, 128"] + dma_x(3 * T + 6, sM)
            it += [f"s_add_u32 s{sM}, s{sQB}, s{sW6}", f"s_add_u32 s{sOQ}, s{sOQ}, {64*12288}"] + dma(3 * T + 7, SW, sOQ, P["wq"], add=SLOT)
        else:
            it = [f"s_add_u32 s{sM}, s{sQB}, s{sW6}"]
            if T == 8:
                it += [f"v_accvgpr_read_b32 v{DV+k}, a{aKV+k}" for k in range(6)]
                it += [f"s_mov_b32 s{sOQ}, 0"] + dma(30, SK, sOQ, kvp) + [f"s_mov_b32 s{sOQ}, {SLOT}"] + dma(31, SK, sOQ, kvp, add=SLOT)
            else:
                it += [f"s_mov_b32 s{sOQ}, {2*SLOT}"] + dma(33, SK, sOQ, kvp) + [f"s_mov_b32 s{sOQ}, {SLOT}"] + dma(34, SV, sOQ, kvp, add=SLOT)
        st.spread(-3, 24, it)
    return st
def cvtQ(hd, order):
    it = []
    for j in order:
        t = XA + (j & 1)
        it += [f"v_cvt_pk_bf16_f32 v{t}, v{96*hd+2*j}, v{96*hd+2*j+1}", f"v_accvgpr_write_b32 a{48*hd+j}, v{t}"]
    return it
def cvtQL(hd):
    it = []
    for dt in range(3):
        it += [f"v_accvgpr_read_b32 v{T2+r}, a{aLA+12*hd+4*dt+r}" for r in range(4)]
        it += [f"v_cvt_pk_bf16_f32 v{T2}, v{T2}, v{T2+1}", f"v_cvt_pk_bf16_f32 v{T2+1}, v{T2+2}, v{T2+3}",
               f"ds_write_b64 v{RW}, v[{T2}:{T2+1}] offset:{6144*hd+128*dt}"]
    return it

def maxn(dst, regs, first):
    it = []; regs = list(regs)
    if first: it.append(f"v_max3_f32 v{dst}, v{regs[0]}, v{regs[1]}, v{regs[2]}"); regs = regs[3:]
    while len(regs) >= 2: it.append(f"v_max3_f32 v{dst}, v{dst}, v{regs[0]}, v{regs[1]}"); regs = regs[2:]
    if regs: it.append(f"v_max_f32 v{dst}, v{dst}, v{regs[0]}")
    return it
def xred(op, v, t, lv):
    it = []
    for p in lv: it += [f"v_mov_b32 v{t}, v{v}", f"v_permlane{p}_swap_b32 v{t}, v{v}", f"{op} v{v}, v{v}, v{t}"]
    return it
def expn(regs, mc, l, init=False):
    it = []; prev = None
    for r in regs:
        it += [f"v_fma_f32 v{r}, v{r}, s{sCS}, -v{mc}", f"v_exp_f32 v{r}, v{r}"]
        if prev is not None: it.append(f"v_add_f32 v{l}, v{l}, v{prev}")
        prev = r
    return it + [f"v_add_f32 v{l}, v{l}, v{prev}"]
def pack(dst, src, n): return [f"v_cvt_pk_bf16_f32 v{dst+j}, v{src+2*j}, v{src+2*j+1}" for j in range(n)]
def upd_main(first):
    it = xred("v_max_f32", vCM, TM, [32])
    if first: return it + [f"v_mov_b32 v{vM}, v{vCM}", f"v_mul_f32 v{vMC}, s{sCS}, v{vM}", f"v_mov_b32 v{vL}, 0"]
    return it + [f"v_add_f32 v{TM}, s{sTH}, v{vM}", f"v_cmp_gt_f32 s[{sFL}:{sFL+1}], v{vCM}, v{TM}",
                 f"v_mov_b32 v{TM+1}, v{vMC}", f"v_cndmask_b32 v{vM}, v{vM}, v{vCM}, s[{sFL}:{sFL+1}]",
                 f"v_mul_f32 v{vMC}, s{sCS}, v{vM}", f"v_sub_f32 v{vAL}, v{TM+1}, v{vMC}", f"v_exp_f32 v{vAL}, v{vAL}",
                 f"v_mul_f32 v{vL}, v{vL}, v{vAL}"]
def left_max(sl, xo): return maxn(TM + 2, range(sl, sl + 4), True) + xred("v_max_f32", TM + 2, TM + 3, [16, 32]) + [f"ds_write_b32 v{XW}, v{TM+2} offset:{xo}"]
def left_soft(st, sl, xo, item, first, a, b):
    d = DSid(); x = TM + 4
    st.spread(-3, -2, [d.rd(f"ds_read_b128 v[{x}:{x+3}], v{XR} offset:{xo}")])
    it = [d.need(), f"v_max3_f32 v{x}, v{x}, v{x+1}, v{x+2}"]
    if first: it += [f"v_max_f32 v{x}, v{x}, v{x+3}", f"v_mul_f32 v{vML}, s{sCS}, v{x}", f"v_mov_b32 v{vLL}, 0"]
    else:
        it += [f"v_max_f32 v{x}, v{x}, v{x+3}", f"v_mul_f32 v{x}, s{sCS}, v{x}", f"v_max_f32 v{x}, v{x}, v{vML}",
               f"v_sub_f32 v{vALL}, v{vML}, v{x}", f"v_exp_f32 v{vALL}, v{vALL}", f"v_mov_b32 v{vML}, v{x}",
               f"v_mul_f32 v{vLL}, v{vLL}, v{vALL}"]
    it += expn(range(sl, sl + 4), vML, vLL) + pack(x, sl, 2)
    it += [f"ds_write_b64 v{PW}, v[{x}:{x+1}] offset:{6144*item}", f"v_xor_b32 v{PW}, 0x800, v{PW}"]
    st.spread(a, b, it)
def stepQ(item, c, sb, sl):
    st = Step(f"Q{item}{c}", [30 + 16 * item + (2 * c - 1 if c else 0)])
    st.pre = adv() + addr(WA, KM, [32, 64, 96]) + addr(WL, KL, [64])
    m = []; l = []
    for kt in range(2):
        for s in range(12):
            b = st.fm(); cc = R("v", sb + 16 * kt, 16); q = 48 * item + 4 * s
            m.append(([b128(b, WA + (s & 3), 12288 * kt + 128 * (s >> 2))], f"{BIG} {cc}, a[{b}:{b+3}], a[{q}:{q+3}], {cc if s else 0}", b))
    for u in range(6):
        b = st.fl(); cc = R("v", sl, 4); rd = []
        if c == 0: rd = [b128(aQL + 4 * u, RR + (u & 1) * (XT - RR), 6144 * item + 128 * (u >> 1))]
        l.append((rd + [b128(b, WL + (u & 1), 128 * (u >> 1))], f"{SML} {cc}, a[{b}:{b+3}], a[{aQL+4*u}:{aQL+4*u+3}], {cc if u else 0}", b))
    if c == 0: st.pre.append(f"v_xor_b32 v{XT}, 64, v{RR}")
    st.jobs = merge(m, l, PAT_EARLY)
    st.spread(21, 26, left_max(sl, 0 if c == 0 else 256))
    return st
rare = []
def stepP(item, c, lab):
    st = Step(f"P{item}{c}", [30 + 16 * item + (2 * c + 2 if c < 7 else 15)])
    st.pre = adv() + addr(WA, VM_, [32, 64, 96]) + addr(WL, VL, [48]) + [f"v_xor_b32 v{XT}, 64, v{PR}"]
    m = []
    for s in range(4):
        for t in range(6):
            b = st.fm(); cc = R("v", 16 * t, 16)
            m.append(([tr(b + 2 * jj, WA + jj + 2 * (t & 1), 6144 * s + 3072 * jj + 128 * (t >> 1)) for jj in (0, 1)],
                      f"{BIG} {cc}, a[{b}:{b+3}], v[{PT+4*s}:{PT+4*s+3}], {cc if (s or c) else 0}", b))
    l = left_tr_jobs(st, 2, OL, "v", aPL, zero=(c == 0))
    l[0] = ([b128(aPL, PR, 6144 * item), b128(aPL + 4, XT, 6144 * item), f"v_xor_b32 v{PR}, 0x800, v{PR}"] + l[0][0],) + l[0][1:]
    st.jobs = merge(m, l, PAT_LATE if c == 7 else PAT_STD)
    if c:
        st.head = [f"s_cmp_lg_u64 s[{sFL}:{sFL+1}], 0", f"s_cbranch_scc1 RARE{lab}", f"RET{lab}:"]
        if lab not in rare: rare.append(lab)
    return st
def ol_scale(): return [f"v_mul_f32 v{OL+i}, v{OL+i}, v{vALL}" for i in range(12)]
def fin_left(st, item, a, b):
    d = DSid(); x = TM + 4
    st.spread(-3, -2, [d.rd(f"ds_read_b128 v[{x}:{x+3}], v{XR} offset:512")])
    it = [d.need(), f"v_add_f32 v{x}, v{x}, v{x+1}", f"v_add_f32 v{x+2}, v{x+2}, v{x+3}", f"v_add_f32 v{x}, v{x}, v{x+2}", f"v_rcp_f32 v{vALL}, v{x}"]
    it += ol_scale()
    for dt in range(3): it += pack(OL + 4 * dt, OL + 4 * dt, 2) + [f"ds_write_b64 v{RW}, v[{OL+4*dt}:{OL+4*dt+1}] offset:{6144*item+128*dt}"]
    st.spread(a, b, it)
def norm_main(toacc):
    it = []
    for j in range(48):
        it += [f"v_mul_f32 v{2*j}, v{2*j}, v{vAL}", f"v_mul_f32 v{2*j+1}, v{2*j+1}, v{vAL}", f"v_cvt_pk_bf16_f32 v{j}, v{2*j}, v{2*j+1}"]
        if toacc and j: it.append(f"v_accvgpr_write_b32 a{j-1}, v{j-1}")
    if toacc: it.append("v_accvgpr_write_b32 a47, v47")
    return it
def setsrd(d, s_): return [f"s_mov_b32 s{d+i}, s{s_+i}" for i in range(3)]
def guarded(val, lab, items):
    def fn():
        e(f"s_cmp_eq_u32 s{sC}, {val}"); e(f"s_cbranch_scc0 {lab}"); g.opt = True
        for x in items: e(x)
        g.opt = False; e(f"{lab}:")
    return fn
def wo_off(m): return (m % 4) * 96 * 1280 + (m // 4) * 256
def item_steps(item, unroll):
    kvp = P["kv"]; t0 = 30 + 16 * item; io = item * 196608; out = []
    sp = 0 if item == 0 else S1
    q0 = stepQ(item, 0, sp, SL2)
    q0.spread(-3, 20, [f"s_mov_b32 s{sOQ}, {io+3*SLOT}"] + dma(t0 + 5, SK, sOQ, kvp))
    if item == 0:
        q0.spread(2, 26, cvtQ(1, range(48))); q0.spread(4, 20, cvtQL(1))
    else:
        q0.spread(2, 30, norm_main(True)); fin_left(q0, 0, 2, 20)
    q1 = stepQ(item, 1, S0, SL)
    q1.spread(-3, 20, [f"s_mov_b32 s{sOQ}, {io+2*SLOT}"] + dma(t0 + 6, SV, sOQ, kvp))
    q0.spread(26, 30, maxn(vCM, range(sp, sp + 16), True))
    q1.spread(2, 27, maxn(vCM, range(sp + 16, sp + 32), False) + upd_main(True) + expn(range(sp, sp + 32), vMC, vL) + pack(PT, sp, 16))
    left_soft(q1, SL2, 0, item, True, 3, 16)
    q1.spread(27, 30, maxn(vCM, range(S0, S0 + 16), True))
    out += [q0, q1]
    def pfill(p):
        p.spread(2, 15, maxn(vCM, range(S0 + 16, S0 + 32), False) + upd_main(False) + expn(range(S0, S0 + 6), vMC, vL))
        p.spread(15, 30, expn(range(S0 + 6, S0 + 16), vMC, vL) + pack(PT, S0, 8))
        left_soft(p, SL, 256, item, False, 4, 24)
    p0 = stepP(item, 0, None); pfill(p0)
    p0.spread(-3, 20, [f"s_mov_b32 s{sOP}, {io+4*SLOT}"] + dma(t0 + 7, SK, sOP, kvp))
    p0.spread(20, 24, setsrd(SDQ, SV) + setsrd(SDP, SK) + [f"s_mov_b32 s{sC}, 1"])
    out.append(p0)
    for c in range(1, 7):
        sfx = f"{item}_{c}" if unroll else f"{item}"
        q = stepQ(item, c + 1, S0, SL); q.label = f"LI{item}"
        if c > 1: q.tail = [f"s_add_u32 s{sC}, s{sC}, 1", f"s_cmp_lg_u32 s{sC}, 7", f"s_cbranch_scc1 LI{item}"]
        nk, nv = (SK, SV) if item == 0 else (SO, SO)
        o = [196608, 196608 + SLOT, 196608, 196608 + 2 * SLOT] if item == 0 else [wo_off(i) for i in range(4)]
        blk = [f"s_add_u32 s{sOQ}, s{sOQ}, {SLOT}", f"s_add_u32 s{sOP}, s{sOP}, {SLOT}",
               guarded(4, f"G4{sfx}", setsrd(SDP, SV) + [f"s_mov_b32 s{sOP}, {io+7*SLOT}"]),
               guarded(5, f"G5{sfx}", setsrd(SDQ, nk) + setsrd(SDP, nk) + [f"s_mov_b32 s{sOQ}, {o[0]}", f"s_mov_b32 s{sOP}, {o[1]}"] +
                       ([f"v_accvgpr_read_b32 v{DV+k}, a{aKV+k}" for k in range(6)] if item else [])),
               guarded(6, f"G6{sfx}", setsrd(SDQ, nv) + [f"s_mov_b32 s{sOQ}, {o[2]}", f"s_mov_b32 s{sOP}, {o[3]}"])]
        q.spread(-4, -2, blk)
        q.spread(-1, 20, dma(t0 + 2 * c + 6, SDQ, sOQ, kvp))
        q.spread(0, 15, expn(range(S0 + 16, S0 + 32), vMC, vL) + pack(PT + 8, S0 + 16, 8))
        q.spread(15, 21, ol_scale())
        q.spread(24, 30, maxn(vCM, range(S0, S0 + 16), True))
        p = stepP(item, c, sfx); pfill(p)
        p.spread(-3, 20, dma(t0 + 2 * c + 7, SDP, sOP, kvp))
        out += [q, p]
    p7 = stepP(item, 7, f"{item}_7"); p7.label = f"LX{item}"
    p7.tail = [f"s_add_u32 s{sC}, s{sC}, 1", f"s_cmp_lg_u32 s{sC}, 7", f"s_cbranch_scc1 LI{item}"]
    if item == 0: p7.spread(-3, 20, [f"s_mov_b32 s{sOQ}, {196608+SLOT}"] + dma(t0 + 20, SV, sOQ, kvp))
    else: p7.spread(-3, 20, [f"s_mov_b32 s{sOQ}, {wo_off(4)}"] + dma(t0 + 20, SO, sOQ, P["wo"]))
    p7.spread(0, 12, expn(range(S0 + 16, S0 + 32), vMC, vL) + pack(PT + 8, S0 + 16, 8))
    p7.spread(4, 12, ol_scale())
    p7.spread(14, 24, xred("v_add_f32", vLL, TM + 3, [16, 32]) + [f"ds_write_b32 v{XW}, v{vLL} offset:512"] +
              xred("v_add_f32", vL, TM, [32]) + [f"v_rcp_f32 v{vAL}, v{vL}"])
    out.append(p7)
    return out

OA, OAL, PK = 96, 160, 168
def stepO(m):
    ch, k4 = divmod(m, 4); hd = k4 >> 1
    st = Step(f"O{m}", [62 + m])
    st.pre = adv() + addr(WA, KM, [128, 32, 160, 64, 192, 96, 224]) + addr(WL, KL, [])
    mj = []; l = []
    for tile in range(4):
        for s in range(6):
            b = st.fm(); cc = R("v", OA + 16 * tile, 16); S = 6 * (k4 & 1) + s
            mj.append(([tr(b + 2 * jj, WA + 2 * tile + jj, 4096 * s + 2048 * jj) for jj in (0, 1)],
                       f"{BIG} {cc}, a[{b}:{b+3}], {'av'[hd]}[{4*S}:{4*S+3}], {cc if (s or k4) else 0}", b))
    for t2 in range(2):
        for u in range(3):
            b = st.fl(); cc = R("v", OAL + 4 * t2, 4); U = 3 * (k4 & 1) + u; q = aQL + 24 * hd + 4 * U; rd = []
            if ch == 0 and t2 == 0: rd = [b128(q, RR + (U & 1) * (XT - RR), 6144 * hd + 128 * (U >> 1))]
            l.append((rd + [tr(b + 2 * jj, WL, 8192 * u + 1024 * jj + 8 * t2) for jj in (0, 1)],
                      f"{SML} {cc}, a[{b}:{b+3}], a[{q}:{q+3}], {cc if (u or k4) else 0}", b))
    st.jobs = merge(mj, l, PAT_STD)
    n = m + 5
    it = [f"s_add_u32 s{sOQ}, s{sCH}, {wo_off(n) - 256 * ch}"]
    it += [f"s_cmp_ge_u32 s{sCH}, {256 * (4 if k4 < 3 else 3)}", f"s_cselect_b32 s{sOQ}, 0x10000000, s{sOQ}"]
    st.spread(-3, 20, it + dma(62 + n, SO, sOQ, P["wo"]))
    def stores(tile, x):
        o = pack(x, OA + 16 * tile, 8)
        for hh in (0, 1): o.append(f"buffer_store_dwordx4 v[{x+4*hh}:{x+4*hh+3}], v{vST}, {srd(SP)}, s{sST} offen offset:{(2*(tile&1)+hh)*1024} {P['st']}".strip())
        return o
    def last():
        return (stores(3, PK + 8) + pack(PK + 16, OAL, 4) +
                [f"buffer_store_dwordx4 v[{PK+16}:{PK+19}], v{vST+1}, {srd(SP)}, s{sST} offen {P['st']}".strip(),
                 f"s_add_u32 s{sST}, s{sST}, {36*1024-4096}"])
    if k4 == 3:
        st.spread(9, 14, stores(0, PK)); st.spread(17, 22, stores(1, PK + 8) + [f"s_add_u32 s{sST}, s{sST}, 4096"])
        st.spread(24, 29, stores(2, PK)); st.spread(22, 23, [f"s_add_u32 s{sCH}, s{sCH}, 256"])
    if k4 == 0 and ch: st.spread(1, 4, last()[10:14]); st.spread(4, 12, last()[:10] + last()[14:])
    st.last = last
    return st

def prologue():
    e("s_cmp_ge_u32 s2, 256"); e("s_cbranch_scc1 K1END")
    e("s_and_b32 s3, s2, 4"); e("s_mul_i32 s3, s3, 10")
    e("s_add_u32 s60, s0, s3"); e("s_addc_u32 s61, s1, 0")
    e("s_load_dwordx4 s[64:67], s[60:61], 0"); e("s_load_dwordx4 s[68:71], s[60:61], 16")
    e("s_load_dwordx2 s[72:73], s[60:61], 32"); e("s_load_dwordx2 s[74:75], s[0:1], 96")
    L.val["v0"] = np.arange(256)
    e("v_lshrrev_b32 v1, 6, v0"); e(f"v_readfirstlane_b32 s{sW}, v1")
    tab = sum(f(2 * i) << (3 * i) for i in range(8))
    e(f"s_mov_b32 s{sTAB}, {hex(tab)}"); L.val[f"s{sTAB}"] = np.full(256, tab)
    e("s_lshr_b32 s57, s2, 3"); e("s_and_b32 s58, s57, 7"); e("s_lshr_b32 s57, s57, 3")
    e("s_and_b32 s59, s2, 3"); e("s_lshl_b32 s59, s59, 2"); e("s_add_u32 s59, s59, s57")
    e(f"s_mul_i32 s{sW6}, s{sW}, 6144"); e(f"s_mul_i32 s{sW5}, s{sW}, 5120")
    o = L.op
    def ff(d, row): o("v_bfe_u32", d, row, 1, 3); o("v_mul_u32_u24", d, 3, d); o("v_bfe_u32", d, f"s{sTAB}", d, 3)
    o("v_and_b32", "v2", 63, "v0"); o("v_lshrrev_b32", "v1", 6, "v0")
    for k in range(2):
        o("v_lshrrev_b32", "v3", 3, "v2"); o("v_mad_u32_u24", "v3", "v1", 40, "v3"); o("v_add_u32", "v3", 8 * k, "v3")
        ff("v4", "v3"); o("v_and_b32", "v5", 7, "v2"); o("v_xor_b32", "v4", "v4", "v5")
        o("v_mul_u32_u24", "v3", 1280, "v3"); o("v_lshl_add_u32", f"v{XV+k}", "v4", 4, "v3")
        L.check(f"v{XV+k}", lambda w, l: (40 * w + 8 * k + (l >> 3)) * 1280 + 16 * ((l & 7) ^ f(40 * w + 8 * k + (l >> 3))))
    o("v_mul_u32_u24", "v6", 384, "v1"); o("v_add_u32", "v6", "v6", "v2")
    for k in range(6):
        o("v_add_u32", "v3", 64 * k, "v6"); o("v_mul_u32_u24", "v4", 2731, "v3"); o("v_lshrrev_b32", "v4", 16, "v4")
        o("v_mul_u32_u24", "v5", 24, "v4"); o("v_sub_u32", "v3", "v3", "v5"); ff("v5", "v4"); o("v_xor_b32", "v3", "v3", "v5")
        o("v_mul_u32_u24", "v5", 12288, "v4"); o("v_lshl_add_u32", f"v{DV+k}", "v3", 4, "v5")
        o("v_mul_u32_u24", "v5", 384, "v4"); o("v_lshl_add_u32", f"v{10+k}", "v3", 4, "v5")
        U = lambda w, l: 64 * (6 * w + k) + l
        L.check(f"v{DV+k}", lambda w, l: U(w, l) // 24 * 12288 + 16 * ((U(w, l) % 24) ^ f(U(w, l) // 24)))
        L.check(f"v{10+k}", lambda w, l: U(w, l) // 24 * 384 + 16 * ((U(w, l) % 24) ^ f(U(w, l) // 24)))
    e("s_waitcnt lgkmcnt(0)")
    def mk(d, lo, mul_reg, mul, size):
        e(f"s_mul_i32 s3, s{mul_reg}, {mul}"); e(f"s_add_u32 s{d}, s{lo}, s3"); e(f"s_addc_u32 s{d+1}, s{lo+1}, 0")
        e(f"s_mov_b32 s{d+2}, {size}"); e(f"s_mov_b32 s{d+3}, 0x20000")
    mk(SX, 64, 58, 184320, 184320); mk(SW, 70, 59, 768, 7864320); e(f"s_sub_u32 s{SW+2}, s{SW+2}, s3")
    e(f"s_mov_b32 s{sOX}, 0"); e(f"s_mov_b32 s{sOQ}, 0"); e(f"s_mov_b32 s{sOP}, 384")
    for it in dma_x(0, sW5) + dma(1, SW, sOQ, P["wq"], base=sW6, add=SLOT) + dma(2, SW, sOP, P["wq"], base=sW6, add=2 * SLOT): do(it)
    e(f"s_mov_b32 s{sOX}, 128"); e(f"s_mov_b32 s{sOQ}, {64*12288}")
    for it in dma_x(3, sW5, add=3 * SLOT) + dma(4, SW, sOQ, P["wq"], base=sW6, add=4 * SLOT): do(it)
    if P["pref"]:
        e("s_getpc_b64 s[62:63]"); e("v_lshlrev_b32 v16, 4, v0")
        for i in range(9):
            e(f"global_load_dwordx4 v[252:255], v16, s[62:63]", "pf"); e("v_add_u32 v16, 0x1000, v16")
    e("s_lshl_b32 s76, s58, 4"); e("s_add_u32 s76, s76, s59"); e("s_lshl_b32 s77, s76, 1")
    mk(SK, 66, 77, 196608, 393216); mk(SV, 68, 77, 196608, 393216); mk(SO, 72, 59, 491520, 491520)
    e("s_and_b32 s3, s2, 4"); e("s_lshl_b32 s3, s3, 5"); e("s_add_u32 s76, s76, s3"); mk(SP, 74, 76, 184320, 184320)
    for d in (SDQ, SDP):
        for x in setsrd(d, SK): e(x)
        e(f"s_mov_b32 s{d+3}, 0x20000")
    e(f"s_mov_b32 s{sCS}, {fb(CS)}"); e(f"s_mov_b32 s{sTH}, {fb(P['T'] / CS)}"); e(f"s_mov_b32 s{sQB}, {3*SLOT}")
    e(f"s_mov_b32 s{sC}, 0"); e(f"s_mov_b32 s{sCH}, 0"); e(f"s_mov_b32 s{sST}, 0")
    for k in range(6): e(f"v_accvgpr_write_b32 a{aKV+k}, v{10+k}")
    o("v_bfe_u32", "v3", "v2", 2, 2); o("v_and_b32", "v4", 3, "v2"); o("v_lshrrev_b32", "v5", 5, "v2")
    o("v_bfe_u32", "v6", "v2", 4, 1); o("v_lshrrev_b32", "v7", 4, "v2"); o("v_and_b32", "v8", 2, "v3"); o("v_lshlrev_b32", "v8", 1, "v8")
    o("v_and_b32", "v9", 15, "v2"); o("v_and_b32", "v10", 31, "v2")
    def fld(l): return (l >> 2) & 3, l & 3, l >> 5, (l >> 4) & 1, l >> 4
    def base(d, row, stride, unit, sub, add=0):
        o("v_mul_u32_u24", d, stride, row); o("v_lshl_add_u32", d, unit, 4, d)
        if sub: o("v_lshl_add_u32", d, sub, 3, d)
        if add: o("v_add_u32", d, add, d)
    o("v_and_b32", "v11", 1, "v4"); o("v_lshrrev_b32", "v12", 1, "v4")
    o("v_lshl_add_u32", "v13", "v5", 3, "v3"); o("v_lshl_add_u32", "v14", "v6", 1, "v11"); o("v_lshl_or_b32", "v15", "v5", 1, "v8")
    o("v_xor_b32", "v14", "v14", "v15"); base(f"v{WMB}", "v13", 384, "v14", "v12")
    def wm(w, l): r, c, h, hf, kg = fld(l); cp = ((c & 1) << 1) | (c >> 1); return (8*h+r)*384 + ((2*hf+(cp >> 1)) ^ f(8*h+r))*16 + 8*(cp & 1)
    L.check(f"v{WMB}", wm)
    o("v_lshl_add_u32", "v13", "v7", 3, "v3"); o("v_lshl_add_u32", "v14", "v1", 1, "v12"); o("v_lshl_or_b32", "v15", "v6", 1, "v8")
    o("v_xor_b32", "v14", "v14", "v15"); base(f"v{VL}", "v13", 384, "v14", "v11")
    def vl(w, l): r, c, h, hf, kg = fld(l); return (8*kg+r)*384 + ((2*w+(c >> 1)) ^ f(8*kg+r))*16 + 8*(c & 1)
    L.check(f"v{VL}", vl)
    o("v_lshl_add_u32", "v14", "v1", 2, "v4"); o("v_lshlrev_b32", "v15", 1, "v3"); o("v_lshl_or_b32", "v15", "v6", 3, "v15")
    o("v_xor_b32", "v14", "v14", "v15"); base("v17", "v13", 256, "v14", None)
    def ol(w, l): r, c, h, hf, kg = fld(l); return (8*kg+r)*256 + ((4*w+c) ^ fo(8*kg+r))*16
    L.check("v17", ol); e(f"v_accvgpr_write_b32 a{aST+1}, v17")
    o("v_lshl_add_u32", "v13", "v5", 2, "v3"); o("v_lshl_add_u32", "v14", "v6", 1, "v12"); o("v_mul_u32_u24", "v15", 3, "v5")
    o("v_or_b32", "v15", "v15", "v8"); o("v_xor_b32", "v14", "v14", "v15"); base(f"v{VM_}", "v13", 384, "v14", "v11")
    def vm(w, l): r, c, h, hf, kg = fld(l); return (4*h+r)*384 + ((2*hf+(c >> 1)) ^ f(4*h+r))*16 + 8*(c & 1)
    L.check(f"v{VM_}", vm)
    o("v_lshl_add_u32", "v14", "v11", 3, "v6"); o("v_lshlrev_b32", "v15", 1, "v3"); o("v_xor_b32", "v14", "v14", "v15")
    base("v17", "v13", 256, "v14", "v12")
    def om(w, l): r, c, h, hf, kg = fld(l); return (4*h+r)*256 + ((8*(c & 1)+hf) ^ fo(4*h+r))*16 + 8*(c >> 1)
    L.check("v17", om); e(f"v_accvgpr_write_b32 a{aST}, v17")
    ff("v14", "v10"); o("v_xor_b32", "v14", "v14", "v5"); base(f"v{KM}", "v10", 384, "v14", None)
    L.check(f"v{KM}", lambda w, l: (l & 31) * 384 + ((l >> 5) ^ f(l & 31)) * 16)
    o("v_lshl_add_u32", "v13", "v1", 5, "v10"); base(f"v{TM+8}", "v13", 128, "v14", None)
    L.check(f"v{TM+8}", lambda w, l: (32 * w + (l & 31)) * 128 + ((l >> 5) ^ f(32 * w + (l & 31))) * 16)
    ff("v15", "v9"); o("v_xor_b32", "v14", "v15", "v7")
    o("v_lshl_add_u32", "v13", "v1", 4, "v9"); base(f"v{KL}", "v13", 384, "v14", None)
    L.check(f"v{KL}", lambda w, l: (16 * w + (l & 15)) * 384 + ((l >> 4) ^ f(16 * w + (l & 15))) * 16)
    base(f"v{TM+9}", "v9", 128, "v14", None, 128 * 128); base(f"v{RR}", "v9", 384, "v14", None, RA); base(f"v{PR}", "v9", 128, "v14", None, RA)
    L.check(f"v{TM+9}", lambda w, l: (128 + (l & 15)) * 128 + ((l >> 4) ^ f(128 + (l & 15))) * 16)
    o("v_lshl_add_u32", "v14", "v1", 1, "v5"); o("v_xor_b32", "v14", "v14", "v15")
    base(f"v{RW}", "v9", 384, "v14", "v6", RA); base(f"v{PW}", "v9", 128, "v14", "v6", RA)
    L.check(f"v{RW}", lambda w, l: RA + (l & 15) * 384 + ((2 * w + (l >> 5)) ^ f(l & 15)) * 16 + 8 * ((l >> 4) & 1))
    o("v_lshlrev_b32", f"v{XR}", 4, "v9"); o("v_add_u32", f"v{XR}", XB, f"v{XR}"); o("v_lshl_add_u32", f"v{XW}", "v1", 2, f"v{XR}")
    o("v_lshlrev_b32", "v13", 4, "v2"); o("v_lshl_add_u32", f"v{vST}", "v1", 13, "v13"); o("v_lshl_add_u32", "v13", "v1", 10, "v13")
    o("v_add_u32", f"v{vST+1}", 32768 - 4096, "v13")
    for k in range(6):
        o("v_mad_u32_u24", "v13", "v1", 24, "v7"); o("v_add_u32", "v13", 4 * k, "v13"); o("v_and_b32", "v14", 8, "v13")
        o("v_lshl_or_b32", "v14", "v7", 1, "v14"); o("v_xor_b32", "v14", "v14", "v9"); base("v17", "v13", 1280, "v14", None)
        L.check("v17", lambda w, l: (24*w+4*k+(l >> 4)) * 1280 + 16 * ((l & 15) ^ fo(24*w+4*k+(l >> 4))))
        e(f"v_accvgpr_write_b32 a{aPL+k}, v17")
    for i in range(192): e(f"v_mov_b32 v{i}, 0")
    for i in range(24): e(f"v_accvgpr_write_b32 a{aLA+i}, 0")

def build():
    unroll = P["stop"] is not None
    prologue()
    ps = stepW(0, 1); ps.fill = {}; ps.jobs = ps.jobs[-(D - E):]; ps.name = "pseudo"
    for j in ps.jobs:
        for r in parse(j[1]).r: e(f"v_accvgpr_write_b32 {r}, 0")
    steps = [ps]
    for T in range(10):
        a, b = stepW(T, 0), stepW(T, 1)
        if T <= 8:
            a.label = "LQ" if T < 8 else "LQX"
            if T: a.tail = [f"s_add_u32 s{sC}, s{sC}, 1", f"s_cmp_lg_u32 s{sC}, 8", "s_cbranch_scc1 LQ"]
        if T == 9:
            a.spread(2, 8, [f"v_accvgpr_mov_b32 a{aKV+k}, a{aPL+k}" for k in range(6)])
            b.spread(2, 30, cvtQ(0, range(48))); b.spread(2, 24, cvtQL(0)); b.spread(23, 24, [f"s_mov_b32 s{sR}, {5*SLOT}"])
        steps += [a, b]
    steps += item_steps(0, unroll) + item_steps(1, unroll)
    steps[-1].spread(20, 22, [f"v_accvgpr_read_b32 v{KM}, a{aST}", f"v_accvgpr_read_b32 v{KL}, a{aST+1}"])
    os_ = [stepO(m) for m in range(20)]
    os_[0].pre.append(f"v_xor_b32 v{XT}, 64, v{RR}")
    nm = norm_main(False); os_[0].spread(2, 30, nm[:72]); os_[1].spread(0, 29, nm[72:]); fin_left(os_[0], 1, 2, 22)
    for m in (4, 8, 12, 16):
        os_[m].label = "LO"
        if m > 4: os_[m].tail = [f"s_cmp_lg_u32 s{sCH}, {5*256}", "s_cbranch_scc1 LO"]
    fin = Step("OX", []); fin.pre = os_[4].pre; fin.tail = os_[8].tail; fin.label = "LOX"
    steps += os_ + [fin]
    if run(steps): dump()
    else:
        for it in os_[0].last(): do(it)
    e("s_waitcnt vmcnt(0)"); e("K1END:"); e("s_endpgm")
    for lab in rare:
        if not any(i.t == f"RET{lab}:" for i in g.ins): continue
        e(f"RARE{lab}:"); e("s_nop 7"); e("s_nop 7")
        for i in range(96): e(f"v_mul_f32 v{i}, v{i}, v{vAL}")
        e("s_nop 1"); e(f"s_branch RET{lab}")
    return fold([i.t for i in pad_hazards(g.ins)])
def dump():
    e("s_waitcnt vmcnt(0) lgkmcnt(0)"); e("s_nop 7"); e("s_nop 7"); e("s_barrier")
    e("s_cmp_ge_u32 s2, 16"); e("s_cbranch_scc1 K1END")
    e("s_add_u32 s80, s74, 0x4000000"); e("s_addc_u32 s81, s75, 0"); e("s_mov_b32 s82, 0x1000000"); e("s_mov_b32 s83, 0x20000")
    e("s_lshl_b32 s84, s2, 20"); e(f"s_lshl_b32 s85, s{sW}, 8"); e("s_add_u32 s84, s84, s85")
    e("v_mbcnt_lo_u32_b32 v255, -1, 0"); e("v_mbcnt_hi_u32_b32 v255, -1, v255"); e("v_lshlrev_b32 v255, 2, v255")
    for p in "va":
        for i in range(256):
            e(f"buffer_store_dword {p}{i}, v255, s[80:83], s84 offen"); e("s_add_u32 s84, s84, 1024")
    e("s_waitcnt vmcnt(0)"); e(f"s_lshl_b32 s85, s{sW}, 8"); e("v_add_u32 v254, s85, v255")
    for i in range(LDS // 1024):
        e(f"ds_read_b32 v1, v254"); e("v_add_u32 v254, 0x400, v254"); e("s_waitcnt lgkmcnt(0)")
        e(f"buffer_store_dword v1, v255, s[80:83], s84 offen"); e("s_add_u32 s84, s84, 1024"); e("s_waitcnt vmcnt(0)")
def fold(t):
    if P["stop"]: return [x for x in t if x[0] != "@"]
    for lab, ex in (("LQ", "LQX"), ("LI0", "LX0"), ("LI1", "LX1"), ("LO", "LOX")):
        idx = [i for i, x in enumerate(t) if x == f"@{lab}:"] + [t.index(f"@{ex}:")]
        trips = [t[a + 1:b] for a, b in zip(idx, idx[1:])]
        nz = lambda x: re.sub(r"vmcnt\(\d+\)", "vmcnt()", x)
        for k, tp in enumerate(trips):
            assert [nz(x) for x in tp] == [nz(x) for x in trips[-1]], (lab, k, [(a, b) for a, b in zip(tp, trips[-1]) if nz(a) != nz(b)][:5])
        body = []
        for col in zip(*trips):
            if "vmcnt" in col[0]: col = sorted(col, key=lambda x: int(re.search(r"vmcnt\((\d+)\)", x).group(1)))
            body.append(col[0])
        t = t[:idx[0]] + [f"{lab}:"] + body + t[idx[-1] + 1:]
    return t
def k2():
    assert all((x * 5826) >> 20 == x // 180 for x in range(2880)) and all((x * 1821) >> 16 == x // 36 for x in range(180))
    g2 = Gen(); e = g2.e
    e("s_cmp_ge_u32 s2, 720"); e("s_cbranch_scc1 K2END")
    e("s_load_dwordx2 s[4:5], s[0:1], 96"); e("s_load_dwordx2 s[6:7], s[0:1], 80")
    e("v_lshrrev_b32 v1, 6, v0"); e("v_readfirstlane_b32 s3, v1"); e("v_and_b32 v0, 63, v0")
    e("s_lshl_b32 s16, s2, 2"); e("s_add_u32 s16, s16, s3")
    e("s_mul_i32 s17, s16, 5826"); e("s_lshr_b32 s17, s17, 20"); e("s_mul_i32 s18, s17, 180"); e("s_sub_u32 s18, s16, s18")
    e("s_mul_i32 s19, s18, 1821"); e("s_lshr_b32 s19, s19, 16"); e("s_mul_i32 s20, s19, 36"); e("s_sub_u32 s20, s18, s20")
    e("s_lshl_b32 s21, s18, 10"); e("v_lshlrev_b32 v1, 4, v0"); e("v_add_u32 v1, s21, v1")
    e(f"s_mul_i32 s22, s17, {16*184320}"); e("s_waitcnt lgkmcnt(0)")
    e("s_add_u32 s8, s4, s22"); e("s_addc_u32 s9, s5, 0"); e(f"s_mov_b32 s10, {16*184320}"); e("s_mov_b32 s11, 0x20000")
    e("s_mov_b32 s12, s6"); e("s_mov_b32 s13, s7"); e(f"s_mov_b32 s14, {8*144*1280*2}"); e("s_mov_b32 s15, 0x20000")
    e("s_mov_b32 s23, 0")
    for i in range(16):
        e(f"buffer_load_dwordx4 v[{8+4*i}:{11+4*i}], v1, s[8:11], s23 offen {P.get('k2', '')}".strip()); e("s_add_u32 s23, s23, 184320")
    e("s_and_b32 s24, s17, 7"); e("s_mul_i32 s24, s24, 368640"); e("s_lshr_b32 s25, s17, 3"); e("s_mul_i32 s25, s25, 1280")
    e("s_add_u32 s24, s24, s25"); e("s_lshl_b32 s25, s19, 8"); e("s_add_u32 s24, s24, s25")
    e("s_cmp_ge_u32 s20, 32"); e("s_cbranch_scc1 K2L")
    e("s_lshr_b32 s25, s20, 3"); e("s_mul_i32 s25, s25, 81920"); e("s_add_u32 s24, s24, s25")
    e("s_and_b32 s25, s20, 7"); e("s_lshl_b32 s25, s25, 4"); e("s_add_u32 s24, s24, s25")
    e("v_and_b32 v2, 31, v0"); e("v_mul_u32_u24 v2, 2560, v2"); e("v_lshrrev_b32 v3, 5, v0"); e("v_lshl_add_u32 v2, v3, 7, v2")
    e("s_branch K2S"); e("K2L:")
    e("s_sub_u32 s25, s20, 32"); e("s_lshl_b32 s25, s25, 6"); e("s_add_u32 s24, s24, s25"); e(f"s_add_u32 s24, s24, {128*2560}")
    e("v_and_b32 v2, 15, v0"); e("v_mul_u32_u24 v2, 2560, v2"); e("v_lshrrev_b32 v3, 4, v0"); e("v_lshl_add_u32 v2, v3, 4, v2")
    e("K2S:"); e("s_mov_b32 s26, 0xffff0000")
    for i in range(16):
        e(f"s_waitcnt vmcnt({15-i})")
        for j in range(4):
            r = 8 + 4 * i + j
            if i == 0: e(f"v_lshlrev_b32 v{72+2*j}, 16, v{r}"); e(f"v_and_b32 v{73+2*j}, s26, v{r}")
            else:
                e(f"v_lshlrev_b32 v4, 16, v{r}"); e(f"v_and_b32 v5, s26, v{r}")
                e(f"v_add_f32 v{72+2*j}, v{72+2*j}, v4"); e(f"v_add_f32 v{73+2*j}, v{73+2*j}, v5")
    for j in range(4): e(f"v_cvt_pk_bf16_f32 v{4+j}, v{72+2*j}, v{73+2*j}")
    e("buffer_store_dwordx4 v[4:7], v2, s[12:15], s24 offen"); e("s_waitcnt vmcnt(0)"); e("K2END:"); e("s_endpgm")
    return [i.t for i in pad_hazards(g2.ins)]
def kern(name, body):
    return f".globl {name}\n.p2align 8\n.type {name},@function\n{name}:\n" + "".join((x if x.endswith(":") else "  " + x) + "\n" for x in body)
def desc(name, nv, acc):
    return (f".p2align 6\n.amdhsa_kernel {name}\n  .amdhsa_next_free_vgpr {nv}\n  .amdhsa_next_free_sgpr 102\n  .amdhsa_accum_offset {acc}\n"
            "  .amdhsa_group_segment_fixed_size 0\n  .amdhsa_kernarg_size 104\n  .amdhsa_user_sgpr_count 2\n"
            "  .amdhsa_user_sgpr_kernarg_segment_ptr 1\n  .amdhsa_system_sgpr_workgroup_id_x 1\n.end_amdhsa_kernel\n")
b1 = build(); b2 = k2()
hdr = "".join(l for l in open(f"cdna_kernels/{NAME}.s.ref") if l.startswith(";") and "@launch" not in l and "verride" not in l and "ceil(" not in l)
out = hdr + f"; @launch kernel={NAME}_kernel grid=(256,1,1) block=(256,1,1) lds={LDS}\n; @launch kernel=reduce_kernel grid=(720,1,1) block=(256,1,1) lds=0\n"
out += '.amdgcn_target "amdgcn-amd-amdhsa--gfx950"\n.text\n' + kern(NAME + "_kernel", b1) + kern("reduce_kernel", b2)
out += "  s_nop 0\n" * 0 + '.section .rodata,"a"\n' + desc(NAME + "_kernel", 512, 256) + desc("reduce_kernel", 80, 80)
fn = f"cdna_kernels/{NAME}.s" if P["name"] == "k" else f"cdna_kernels/{P['name']}.s"
open(fn, "w").write(out)
print(fn, "instrs", len(b1), "nops", sum(x.startswith("s_nop") for x in b1))
```

```python
import re
import numpy as np

def rng(p, a, n):
    return [f"{p}{a+i}" for i in range(n)]
def R(p, a, n=1):
    return f"{p}{a}" if n == 1 else f"{p}[{a}:{a+n-1}]"
def expand(op):
    op = op.strip()
    m = re.fullmatch(r"([vas])\[(\d+):(\d+)\]", op)
    if m: return rng(m.group(1), int(m.group(2)), int(m.group(3)) - int(m.group(2)) + 1)
    m = re.fullmatch(r"([vas])(\d+)", op)
    if m: return [op]
    if op in ("m0", "vcc", "exec"): return [op]
    return []

class Ins:
    __slots__ = ("t", "k", "w", "r", "passes", "c", "opt")
    def __init__(s, t, k, w=(), r=(), passes=0, c=()):
        s.t, s.k, s.w, s.r, s.passes, s.c = t, k, list(w), list(r), passes, list(c)
        s.opt = False

TRANS = ("v_exp_f32", "v_rcp_f32", "v_log_f32", "v_rsq_f32")
def parse(t):
    t = t.strip()
    if t.endswith(":"): return Ins(t, "label")
    mn, _, rest = t.partition(" ")
    ops = [o.strip() for o in rest.split(",")] if rest else []
    ops = [o.split(" ")[0] for o in ops]
    ops = [o[1:] if re.match(r"-[vas]", o) else o for o in ops]
    if mn.startswith("v_mfma"):
        p = 8 if "32x32" in mn else 4
        return Ins(t, "mfma", expand(ops[0]), expand(ops[1]) + expand(ops[2]), p, expand(ops[3]))
    if mn.startswith("ds_read"):
        return Ins(t, "ds", expand(ops[0]), expand(ops[1]))
    if mn.startswith("ds_write"):
        return Ins(t, "ds", [], expand(ops[0]) + expand(ops[1]))
    if mn.startswith("buffer_load"):
        if " lds" in t: return Ins(t, "dma", [], sum((expand(o) for o in ops), []) + ["m0"])
        return Ins(t, "vmem", expand(ops[0]), sum((expand(o) for o in ops[1:]), []))
    if mn.startswith("buffer_store"):
        return Ins(t, "store", [], sum((expand(o) for o in ops), []), c=expand(ops[0]))
    if mn.startswith("buffer_atomic"):
        return Ins(t, "vmem", expand(ops[0]), sum((expand(o) for o in ops), []))
    if mn.startswith("global_load"):
        return Ins(t, "vmem", expand(ops[0]), sum((expand(o) for o in ops[1:]), []))
    if mn.startswith("v_permlane"):
        return Ins(t, "perm", expand(ops[0]) + expand(ops[1]), expand(ops[0]) + expand(ops[1]))
    if mn.startswith("v_readfirstlane"):
        return Ins(t, "rfl", expand(ops[0]), expand(ops[1]))
    if mn.startswith("v_cmp"):
        return Ins(t, "valu", expand(ops[0]), sum((expand(o) for o in ops[1:]), []))
    if mn.startswith("v_"):
        k = "trans" if mn in TRANS else "valu"
        r = sum((expand(o) for o in ops[1:]), [])
        return Ins(t, k, expand(ops[0]), r)
    if mn == "s_nop": return Ins(t, "nop", passes=int(ops[0]) + 1)
    if mn.startswith("s_cbranch") or mn == "s_branch": return Ins(t, "branch")
    if mn in ("s_waitcnt", "s_barrier", "s_endpgm", "s_setprio"): return Ins(t, "sctl")
    if mn.startswith("s_cmp"): return Ins(t, "salu", [], sum((expand(o) for o in ops), []))
    if mn.startswith("s_"):
        return Ins(t, "salu", expand(ops[0]) if ops else [], sum((expand(o) for o in ops[1:]), []))
    raise ValueError(t)

VAL = ("valu", "trans", "perm", "rfl")
def need_states(prod, cons):
    n = 0
    pw, cr, cw = set(prod.w), set(cons.r), set(cons.w)
    if prod.k == "mfma":
        big = 12 if prod.passes == 8 else 8
        if cons.k == "mfma":
            if pw & cr: n = max(n, big)
            if pw & set(cons.c):
                if not (cons.c == prod.w and cons.passes == prod.passes): n = max(n, big - 2)
            if (pw & cw) and not (cons.w == prod.w and cons.passes == prod.passes): n = max(n, big)
        elif cons.k in VAL or cons.k in ("ds", "vmem", "store", "dma"):
            if pw & (cr | cw): n = max(n, big)
        if cons.k in VAL and (set(prod.c) & cw): n = max(n, 7 if prod.passes == 8 else 3)
    if prod.k in VAL:
        if cons.k == "mfma" and (pw & (cr | set(cons.c))): n = max(n, 2)
        if cons.k == "perm" and (pw & cr): n = max(n, 2)
        if cons.k == "rfl" and (pw & cr): n = max(n, 1)
        if prod.k == "trans" and cons.k in VAL and cons.k != "trans" and (pw & cr): n = max(n, 1)
        sw = {x for x in pw if x[0] == "s" or x == "vcc"}
        if sw & cr:
            if cons.k in ("vmem", "store", "dma"): n = max(n, 5)
            elif cons.k in VAL: n = max(n, 2)
    if prod.k == "store" and cons.k in VAL and (set(prod.c) & cw): n = max(n, 2)
    if prod.k == "salu" and "m0" in pw and cons.k == "dma": n = max(n, 1)
    return n

def pad_hazards(seq, hist=None):
    out = list(hist or [])
    base = len(out)
    for ins in seq:
        if ins.k not in ("label", "nop"):
            dist, need = 0, 0
            for p in reversed(out):
                if p.k == "label": continue
                if dist >= 13: break
                q = need_states(p, ins) - dist
                if q > need: need = q
                dist += 0 if p.opt else (p.passes if p.k == "nop" else 1)
            while need > 0:
                m = min(need, 8)
                out.append(parse(f"s_nop {m-1}")); need -= m
        out.append(ins)
    return out[base:]

class Lane:
    def __init__(s, g): s.g = g; s.val = {}
    def _v(s, x):
        if isinstance(x, int): return np.full(256, x, dtype=np.int64)
        return s.val[x]
    def _t(s, x): return str(x) if not isinstance(x, int) else (str(x) if -16 <= x <= 64 else hex(x))
    def op(s, mn, d, *a):
        s.g.e(f"{mn} {d}, " + ", ".join(s._t(x) for x in a))
        v = [s._v(x) for x in a]
        f = {"v_and_b32": lambda: v[0] & v[1], "v_or_b32": lambda: v[0] | v[1], "v_xor_b32": lambda: v[0] ^ v[1],
             "v_add_u32": lambda: v[0] + v[1], "v_sub_u32": lambda: v[0] - v[1],
             "v_lshlrev_b32": lambda: v[1] << v[0], "v_lshrrev_b32": lambda: v[1] >> v[0],
             "v_mul_u32_u24": lambda: v[0] * v[1], "v_mad_u32_u24": lambda: v[0] * v[1] + v[2],
             "v_bfe_u32": lambda: (v[0] >> v[1]) & ((1 << v[2]) - 1),
             "v_lshl_add_u32": lambda: (v[0] << v[1]) + v[2], "v_lshl_or_b32": lambda: (v[0] << v[1]) | v[2],
             "v_mov_b32": lambda: v[0]}[mn]
        s.val[d] = f() & 0xffffffff
        return d
    def check(s, d, fn):
        exp = np.array([fn(t >> 6, t & 63) for t in range(256)], dtype=np.int64)
        assert (s.val[d] == exp).all(), (d, s.val[d][:80], exp[:80])

class Gen:
    def __init__(s):
        s.ins = []
        s.ds_n = 0; s.ds_done = 0; s.vm = []; s.opt = False; s.cnt_st = False
    def vm_n(s, tags):
        last = max(i for i, x in enumerate(s.vm) if x in tags)
        return len(s.vm) - 1 - last
    def e(s, t, tag=None):
        i = parse(t); i.opt = s.opt; s.ins.append(i)
        if s.opt: return None
        if i.k in ("dma", "vmem") or (i.k == "store" and s.cnt_st): s.vm.append(tag)
        if i.k == "ds":
            s.ds_n += 1
            return s.ds_n
        if t.startswith("s_waitcnt"):
            m = re.search(r"lgkmcnt\((\d+)\)", t)
            if m: s.ds_done = max(s.ds_done, s.ds_n - int(m.group(1)))
        return None
    def need_ds(s, i):
        if i is None or i <= s.ds_done: return
        n = min(s.ds_n - i, 15)
        s.e(f"s_waitcnt lgkmcnt({n})")
    def mark(s): return len(s.ins)
```

```python
import sys, os, re, struct, math
sys.path.insert(0, os.path.dirname(os.path.abspath(__file__)))
from asmlib import *

P = dict(D=6, E=2, kv="nt", wq="nt", wo="", xp="", st="sc1", stop=None, pref=9, name="k", T=8.0, prof=0, k2="", cs=1, fuse=0, rp="sc1", dot=1, nodma=0, w2=0)
for a in sys.argv[1:]:
    k, v = a.split("=", 1)
    P[k] = type(P[k])(v) if isinstance(P[k], (int, float)) else v
D, E = P["D"], P["E"]
NAME = "concat_heads__gqa_block_cached__gqa_block_cached__near_ridge"
SLOT = 24576; RA = 147456; XB = RA + 12288; LDS = XB + 1024
def f(row): return (((row >> 1) & 1) << 2) | ((((row >> 2) ^ (row >> 3)) & 1) << 1) | ((row >> 2) & 1)
def fo(row): return ((row & 3) << 1) | (((row >> 3) & 1) << 3)
def fb(x): return hex(struct.unpack("<I", struct.pack("<f", x))[0])
CS = math.log2(math.e) / math.sqrt(192.0)

SX, SW, SK, SV, SO, SP, SDQ, SDP = 4, 8, 12, 16, 20, 24, 28, 32
sW, sW6, sW5, sR, sQB, sM, sOQ, sOP, sC, sT, sCS, sTH, sFL, sTAB, sT2, sCH, sST, sOX = 36, 37, 38, 39, 40, 42, 43, 44, 45, 46, 47, 48, 50, 52, 53, 54, 55, 56
sGI, sHP, sTODO, sS, sD, sN, sLO, sHI, sOB = 57, 59, 60, 61, 62, 63, 64, 65, 66
def srd(b): return f"s[{b}:{b+3}]"
S0, S1, PT, OL, SL = 96, 128, 160, 176, 188
DV = 192; XV = 198; WA = 200; WL = 208; LB = 210
vM, vMC, vL, vAL, vCM, vML, vLL, vALL = range(214, 222)
PW, PR, XW, XR, RW, RR = range(222, 228)
TM = 228
SL2 = 240; XT = 244; XA = 246; vST = 248; T2 = 250
aQL, aXF, aKV, aLA, aFM, aFL, aPL, aST = 96, 120, 144, 150, 176, 224, 248, 174
KM, KL, VM_, VL = LB, LB + 1, LB + 2, LB + 3

g = Gen(); L = Lane(g); g.cnt_st = bool(P["cs"])
e = g.e
BIG = "v_mfma_f32_32x32x16_bf16"; SML = "v_mfma_f32_16x16x32_bf16"

class Step:
    def __init__(s, name, tiles):
        s.name, s.tiles = name, tiles
        s.jobs = []; s.pre = []; s.fill = {}; s.label = None; s.tail = []; s.head = []; s.prebar = []; s.postbar = []
        s.nm = 0; s.nl = 0
    def fm(s): b = aFM + 4 * (s.nm % 12); s.nm += 1; return b
    def fl(s): b = aFL + 4 * (s.nl % 6); s.nl += 1; return b
    def job(s, reads, mf, buf): s.jobs.append((reads, mf, buf))
    def spread(s, a, b, items):
        n = len(items)
        for i, it in enumerate(items): s.fill.setdefault(a + (i * (b - a)) // n, []).append(it)
def do(it):
    if callable(it): it()
    else: e(it)
def merge(m, l, pos):
    out = []; m = list(m); l = list(l)
    for i in range(len(m) + len(l)): out.append(l.pop(0) if i in pos else m.pop(0))
    return out
PAT_STD = (4, 9, 14, 19, 24, 29); PAT_EARLY = (3, 6, 9, 12, 15, 18); PAT_LATE = (13, 16, 19, 22, 25, 28)
marks = []
stamps = []
def stamp(n, real=False):
    if not P["prof"] or n in ("LX0", "LX1", "Q10", "LI1"): return
    e(f"s_mem{'real' if real else ''}time s[78:79]"); e("s_waitcnt lgkmcnt(0)"); e(f"s_mov_b32 s{80+len(stamps)}, s78"); stamps.append(n)
def prof_out():
    e("s_waitcnt vmcnt(0)"); stamp("end"); stamp("rend", True); print(stamps)
    e("s_load_dwordx2 s[60:61], s[0:1], 88"); e("s_waitcnt lgkmcnt(0)")
    e("s_lshl_b32 s3, s2, 8"); e(f"s_lshl_b32 s62, s{sW}, 6"); e("s_add_u32 s3, s3, s62")
    e("s_add_u32 s4, s74, 0x8000000"); e("s_addc_u32 s5, s75, 0"); e("s_mov_b32 s6, 0x10000"); e("s_mov_b32 s7, 0x20000")
    e("s_mov_b32 s8, s60"); e("s_mov_b32 s9, s61"); e("s_mov_b32 s10, 64"); e("s_mov_b32 s11, 0x20000"); e("v_mov_b32 v1, 0")
    for i in range(len(stamps)):
        e(f"v_mov_b32 v2, s{80+i}"); e(f"buffer_store_dword v2, v1, s[4:7], s3 offen offset:{4*i}")
def boundary(st):
    for it in st.tail:
        if not (P["stop"] and "cbranch" in it): do(it)
    first = st.label in ("LQ", "LI0", "LI1", "LO") and st.label not in stamps
    if first: stamp(st.label)
    if st.label: e(f"@{st.label}:")
    if st.label in ("LQX", "LX0", "LX1", "LOX") or st.name in ("Q01", "Q10", "O0"): stamp(st.label or st.name)
    if not st.jobs: return
    for it in st.pre: do(it)
    for it in st.prebar: do(it)
    e(f"s_waitcnt vmcnt({g.vm_n(st.tiles)}) lgkmcnt(0)"); e("s_barrier")
    for it in st.postbar: do(it)
def run(steps):
    jobs = [(si, ji) for si, st in enumerate(steps) for ji in range(len(st.jobs))]
    start = [0]
    for st in steps: start.append(start[-1] + len(st.jobs))
    opened = 0; predone = 0
    rp = start[1]; free = {j[2]: n for n, j in enumerate(steps[0].jobs)}; ids = {n: None for n in range(rp)}
    for i in range(len(jobs)):
        nxt = opened + 1
        if nxt < len(steps):
            if i >= start[nxt] - (D - E):
                assert rp >= start[nxt], "reads lag"
                boundary(steps[nxt]); opened = nxt
        n = 0
        while rp < len(jobs) and rp <= i + D and jobs[rp][0] <= opened and n < 2:
            si, ji = jobs[rp]; reads, mf, buf = steps[si].jobs[ji]
            if free.get(buf, -1) >= i: break
            for r in reads:
                x = e(r)
                if x: ids[rp] = x
            free[buf] = rp; rp += 1; n += 1
        for si in range(len(steps)):
            if si <= opened:
                for it in steps[si].fill.pop(i - start[si], []): do(it)
        if i >= 0:
            si, ji = jobs[i]
            assert rp > i
            if ji == 0:
                for it in steps[si].head: do(it)
            if P["w2"] and ids[i] and ids[i] > g.ds_done and ids.get(i + 1) and jobs[i + 1][0] <= opened: g.need_ds(ids[i + 1])
            g.need_ds(ids[i]); e(steps[si].jobs[ji][1])
            if P["stop"] == steps[si].name and ji == len(steps[si].jobs) - 1: return True
    for st in steps: assert not st.fill, (st.name, st.fill.keys())
    return False
if P["nodma"]:
    e0 = g.e
    def e(t, tag=None):
        if " lds" in t and t.startswith("buffer_load") and (5 <= tag < 37 or tag >= 67):
            g.vm.append(tag); return e0("s_nop 0") if P["nodma"] == 1 else None
        if t.startswith("s_add_u32 m0") and P["nodma"] == 2 and len(g.vm) > 45: return None
        return e0(t, tag)
class DSid:
    def rd(s, t): return lambda: setattr(s, "i", e(t))
    def need(s): return lambda: g.need_ds(s.i)

def dma(tag, sr, so, pol, vo=DV, base=sM, add=0):
    out = []
    for k in range(6):
        out.append(f"s_add_u32 m0, s{base}, {add + 1024 * k}")
        out.append(lambda k=k: e(f"buffer_load_dwordx4 v{vo+k}, {srd(sr)}, s{so} offen {pol} lds".replace("  ", " "), tag))
    return out
XVR = [198, 199, 240, 241, 242, 243]
def dma_x(tag, base, add=0, pol=None):
    out = []
    for k in range(6):
        out.append(f"s_add_u32 m0, s{base}, {add + 1024 * k}")
        out.append(lambda k=k: e(f"buffer_load_dwordx4 v{XVR[k]}, {srd(SX)}, s{sOX} offen {P['wq']} lds".replace("  ", " "), tag))
    return out
def adv():
    return [f"s_add_u32 s{sM}, s{sR}, s{sW6}", f"s_add_u32 s{sR}, s{sR}, {SLOT}",
            f"s_cmp_eq_u32 s{sR}, {6*SLOT}", f"s_cselect_b32 s{sR}, 0, s{sR}"]
def addr(dst, base, xors):
    return [f"v_add_u32 v{dst}, s{sR}, v{base}"] + [f"v_xor_b32 v{dst+1+i}, {x}, v{dst}" for i, x in enumerate(xors)]
def tr(d, a, o): return f"ds_read_b64_tr_b16 a[{d}:{d+1}], v{a} offset:{o}"
def b128(d, a, o): return f"ds_read_b128 a[{d}:{d+3}], v{a} offset:{o}"
def left_tr_jobs(st, nu, acc, accp, bfr, zero=False):
    out = []
    for u in range(nu):
        for dt in range(3):
            b = st.fl(); c = R(accp, acc + 4 * dt, 4)
            out.append(([tr(b + 2 * jj, WL + jj, 12288 * u + 1536 * jj + 128 * dt) for jj in (0, 1)],
                        f"{SML} {c}, a[{b}:{b+3}], a[{bfr+4*u}:{bfr+4*u+3}], {'0' if zero and u == 0 else c}", b))
    return out

WMB, WLB = TM + 10, VL
def stepW(T, hd):
    st = Step(f"{'AB'[hd]}{T}", [3 * T, 3 * T + 1] if hd == 0 else [3 * T + 2])
    if hd == 0:
        st.pre = [f"s_xor_b32 s{sQB}, s{sQB}, {3*SLOT}", f"s_add_u32 s{sR}, s{sQB}, {SLOT}",
                  f"v_add_u32 v{XA}, s{sQB}, v{TM+8}", f"v_add_u32 v{XA+1}, s{sQB}, v{TM+9}"]
    else: st.pre = [f"s_add_u32 s{sR}, s{sQB}, {2*SLOT}"]
    st.pre += addr(WA, WMB, [48, 64, 112]) + addr(WL, WLB, [48])
    m = []
    for s in range(4):
        for dt in range(6):
            b = st.fm(); rd = []
            if hd == 0 and dt == 0:
                rd = ([f"v_xor_b32 v{XT}, {32*s}, v{XA}"] if s else []) + [b128(aXF + 4 * s, XT if s else XA, 0)]
            rd += [tr(b + 2 * jj, WA + jj + 2 * (dt & 1), 6144 * s + 1536 * jj + 128 * (dt >> 1)) for jj in (0, 1)]
            c = R("v", 96 * hd + 16 * dt, 16)
            m.append((rd, f"{BIG} {c}, a[{b}:{b+3}], a[{aXF+4*s}:{aXF+4*s+3}], {c}", b))
    l = left_tr_jobs(st, 2, aLA + 12 * hd, "a", aXF + 16)
    if hd == 0:
        l[0] = ([b128(aXF + 16, XA + 1, 0)] + l[0][0],) + l[0][1:]
        l[3] = ([f"v_xor_b32 v{XT+1}, 64, v{XA+1}", b128(aXF + 20, XT + 1, 0)] + l[3][0],) + l[3][1:]
    st.jobs = merge(m, l, PAT_STD)
    sf = f"{T}" if P["stop"] else ""
    if hd == 0:
        it = [f"s_xor_b32 s{sM}, s{sQB}, {3*SLOT}", f"s_add_u32 s{sM}, s{sM}, s{sW6}", f"s_add_u32 s{sOP}, s{sOP}, {64*12288}",
              guarded(9, "GA9" + sf, setsrd(SW, SV) + [f"s_mov_b32 s{sOP}, 0"] + [f"v_accvgpr_mov_b32 a{aKV+k}, a{aPL+k}" for k in range(6)] + ["s_mov_b64 vcc, -1"])]
        st.spread(-3, 20, it + dma(3 * T + 5, SW, sOP, P["wq"], add=2 * SLOT))
    else:
        it = [f"s_add_u32 s{sM}, s{sQB}, s{sW6}", f"s_add_u32 s{sOX}, s{sOX}, 128", f"s_add_u32 s{sOQ}, s{sOQ}, {64*12288}",
              guarded(8, "GB8" + sf, setsrd(SX, SK) + setsrd(SW, SK) + [f"s_mov_b32 s{sOX}, 0", f"s_mov_b32 s{sOQ}, {SLOT}"] +
                      [f"v_accvgpr_read_b32 v{r+0}, a{aKV+k}" for k in range(6) for r in (DV + k, XVR[k])]),
              guarded(9, "GB9" + sf, [f"s_mov_b32 s{sOX}, {2*SLOT}", f"s_mov_b32 s{sOQ}, {SLOT}", f"s_mov_b32 s{sR}, {5*SLOT}"], "vcc")]
        st.spread(-3, 24, it + dma_x(3 * T + 6, sM) + dma(3 * T + 7, SW, sOQ, P["wq"], add=SLOT))
        c = cvtQ(0, range(48)); cl = cvtQL(0)
        for i in range(9):
            st.spread(2 + 23 * i // 8, 3 + 23 * i // 8, [guarded(9, f"GC{i}{sf}", c[16 * i:16 * i + 16] if i < 6 else cl[7 * (i - 6):7 * (i - 5)], "vcc")])
    return st
def cvtQ(hd, order):
    it = []
    for j in order:
        t = XA + (j & 1)
        it += [f"v_cvt_pk_bf16_f32 v{t}, v{96*hd+2*j}, v{96*hd+2*j+1}", f"v_accvgpr_write_b32 a{48*hd+j}, v{t}"]
    return it
def cvtQL(hd):
    it = []
    for dt in range(3):
        it += [f"v_accvgpr_read_b32 v{T2+r}, a{aLA+12*hd+4*dt+r}" for r in range(4)]
        it += [f"v_cvt_pk_bf16_f32 v{T2}, v{T2}, v{T2+1}", f"v_cvt_pk_bf16_f32 v{T2+1}, v{T2+2}, v{T2+3}",
               f"ds_write_b64 v{RW}, v[{T2}:{T2+1}] offset:{6144*hd+128*dt}"]
    return it

def maxn(dst, regs, first):
    it = []; regs = list(regs)
    if first: it.append(f"v_max3_f32 v{dst}, v{regs[0]}, v{regs[1]}, v{regs[2]}"); regs = regs[3:]
    while len(regs) >= 2: it.append(f"v_max3_f32 v{dst}, v{dst}, v{regs[0]}, v{regs[1]}"); regs = regs[2:]
    if regs: it.append(f"v_max_f32 v{dst}, v{dst}, v{regs[0]}")
    return it
def xred(op, v, t, lv):
    it = []
    for p in lv: it += [f"v_mov_b32 v{t}, v{v}", f"v_permlane{p}_swap_b32 v{t}, v{v}", f"{op} v{v}, v{v}, v{t}"]
    return it
def expn(regs, mc, l, init=False):
    it = []; prev = None
    for r in regs:
        it += [f"v_fma_f32 v{r}, v{r}, s{sCS}, -v{mc}", f"v_exp_f32 v{r}, v{r}"]
        if prev is not None: it.append(f"v_add_f32 v{l}, v{l}, v{prev}")
        prev = r
    return it + [f"v_add_f32 v{l}, v{l}, v{prev}"]
def pack(dst, src, n): return [f"v_cvt_pk_bf16_f32 v{dst+j}, v{src+2*j}, v{src+2*j+1}" for j in range(n)]
def upd_main(first):
    it = xred("v_max_f32", vCM, TM, [32])
    if first: return it + [f"v_mov_b32 v{vM}, v{vCM}", f"v_mul_f32 v{vMC}, s{sCS}, v{vM}", f"v_mov_b32 v{vL}, 0"]
    return it + [f"v_add_f32 v{TM}, s{sTH}, v{vM}", f"v_cmp_gt_f32 s[{sFL}:{sFL+1}], v{vCM}, v{TM}",
                 f"v_mov_b32 v{TM+1}, v{vMC}", f"v_cndmask_b32 v{vM}, v{vM}, v{vCM}, s[{sFL}:{sFL+1}]",
                 f"v_mul_f32 v{vMC}, s{sCS}, v{vM}", f"v_sub_f32 v{vAL}, v{TM+1}, v{vMC}", f"v_exp_f32 v{vAL}, v{vAL}",
                 f"v_mul_f32 v{vL}, v{vL}, v{vAL}"]
def left_max(sl, xo): return maxn(TM + 2, range(sl, sl + 4), True) + xred("v_max_f32", TM + 2, TM + 3, [16, 32]) + [f"ds_write_b32 v{XW}, v{TM+2} offset:{xo}"]
def left_soft(st, sl, xo, item, first, a, b):
    d = DSid(); x = TM + 4
    st.spread(-3, -2, [d.rd(f"ds_read_b128 v[{x}:{x+3}], v{XR} offset:{xo}")])
    it = [d.need(), f"v_max3_f32 v{x}, v{x}, v{x+1}, v{x+2}"]
    if first: it += [f"v_max_f32 v{x}, v{x}, v{x+3}", f"v_mul_f32 v{vML}, s{sCS}, v{x}", f"v_mov_b32 v{vLL}, 0"]
    else:
        it += [f"v_max_f32 v{x}, v{x}, v{x+3}", f"v_mul_f32 v{x}, s{sCS}, v{x}", f"v_max_f32 v{x}, v{x}, v{vML}",
               f"v_sub_f32 v{vALL}, v{vML}, v{x}", f"v_exp_f32 v{vALL}, v{vALL}", f"v_mov_b32 v{vML}, v{x}",
               f"v_mul_f32 v{vLL}, v{vLL}, v{vALL}"]
    it += expn(range(sl, sl + 4), vML, vLL) + pack(x, sl, 2)
    it += [f"ds_write_b64 v{PW}, v[{x}:{x+1}] offset:{6144*item}", f"v_xor_b32 v{PW}, 0x800, v{PW}"]
    st.spread(a, b, it)
def stepQ(item, c, sb, sl):
    st = Step(f"Q{item}{c}", [30 + 16 * item + (2 * c - 1 if c else 0)])
    st.pre = adv() + addr(WA, KM, [32, 64, 96]) + addr(WL, KL, [64])
    m = []; l = []
    for kt in range(2):
        for s in range(12):
            b = st.fm(); cc = R("v", sb + 16 * kt, 16); q = 48 * item + 4 * s
            m.append(([b128(b, WA + (s & 3), 12288 * kt + 128 * (s >> 2))], f"{BIG} {cc}, a[{b}:{b+3}], a[{q}:{q+3}], {cc if s else 0}", b))
    for u in range(6):
        b = st.fl(); cc = R("v", sl, 4); rd = []
        if c == 0: rd = [b128(aQL + 4 * u, RR + (u & 1) * (XT - RR), 6144 * item + 128 * (u >> 1))]
        l.append((rd + [b128(b, WL + (u & 1), 128 * (u >> 1))], f"{SML} {cc}, a[{b}:{b+3}], a[{aQL+4*u}:{aQL+4*u+3}], {cc if u else 0}", b))
    if c == 0: st.pre.append(f"v_xor_b32 v{XT}, 64, v{RR}")
    st.jobs = merge(m, l, PAT_EARLY)
    st.spread(21, 26, left_max(sl, 0 if c == 0 else 256))
    return st
rare = []
def stepP(item, c, lab):
    st = Step(f"P{item}{c}", [30 + 16 * item + (2 * c + 2 if c < 7 else 15)])
    st.pre = adv() + addr(WA, VM_, [32, 64, 96]) + addr(WL, VL, [48]) + [f"v_xor_b32 v{XT}, 64, v{PR}"]
    m = []
    for s in range(4):
        for t in range(6):
            b = st.fm(); cc = R("v", 16 * t, 16)
            m.append(([tr(b + 2 * jj, WA + jj + 2 * (t & 1), 6144 * s + 3072 * jj + 128 * (t >> 1)) for jj in (0, 1)],
                      f"{BIG} {cc}, a[{b}:{b+3}], v[{PT+4*s}:{PT+4*s+3}], {cc if (s or c) else 0}", b))
    l = left_tr_jobs(st, 2, OL, "v", aPL, zero=(c == 0))
    l[0] = ([b128(aPL, PR, 6144 * item), b128(aPL + 4, XT, 6144 * item), f"v_xor_b32 v{PR}, 0x800, v{PR}"] + l[0][0],) + l[0][1:]
    st.jobs = merge(m, l, PAT_LATE if c == 7 else PAT_STD)
    if c:
        st.head = [f"s_cmp_lg_u64 s[{sFL}:{sFL+1}], 0", f"s_cbranch_scc1 RARE{lab}", f"RET{lab}:"]
        if lab not in rare: rare.append(lab)
    return st
def ol_scale(): return [f"v_mul_f32 v{OL+i}, v{OL+i}, v{vALL}" for i in range(12)]
def fin_left(st, item, a, b):
    d = DSid(); x = TM + 4
    st.spread(-3, -2, [d.rd(f"ds_read_b128 v[{x}:{x+3}], v{XR} offset:512")])
    it = [d.need(), f"v_add_f32 v{x}, v{x}, v{x+1}", f"v_add_f32 v{x+2}, v{x+2}, v{x+3}", f"v_add_f32 v{x}, v{x}, v{x+2}", f"v_rcp_f32 v{vALL}, v{x}"]
    it += ol_scale()
    for dt in range(3): it += pack(OL + 4 * dt, OL + 4 * dt, 2) + [f"ds_write_b64 v{RW}, v[{OL+4*dt}:{OL+4*dt+1}] offset:{6144*item+128*dt}"]
    st.spread(a, b, it)
def norm_main(toacc):
    it = []
    for j in range(48):
        it += [f"v_mul_f32 v{2*j}, v{2*j}, v{vAL}", f"v_mul_f32 v{2*j+1}, v{2*j+1}, v{vAL}", f"v_cvt_pk_bf16_f32 v{j}, v{2*j}, v{2*j+1}"]
        if toacc and j: it.append(f"v_accvgpr_write_b32 a{j-1}, v{j-1}")
    if toacc: it.append("v_accvgpr_write_b32 a47, v47")
    return it
def setsrd(d, s_): return [f"s_mov_b32 s{d+i}, s{s_+i}" for i in range(3)]
def guarded(val, lab, items, reg=sC):
    def fn():
        if reg == "vcc": e(f"s_cbranch_vccnz X{lab}")
        else: e(f"s_cmp_eq_u32 s{reg}, {val}"); e(f"s_cbranch_scc1 X{lab}")
        e(f"X{lab}:"); g.opt = True
        for x in items: do(x)
        g.opt = False; e(f"Y{lab}:")
    return fn
def wo_off(m): return (m % 4) * 96 * 1280 + (m // 4) * 256
def item_steps(item, unroll):
    kvp = P["kv"]; t0 = 30 + 16 * item; io = item * 196608; out = []
    sp = 0 if item == 0 else S1
    q0 = stepQ(item, 0, sp, SL2)
    q0.spread(-3, 20, [f"s_mov_b32 s{sOQ}, {io+3*SLOT}"] + dma(t0 + 5, SK, sOQ, kvp))
    if item == 0:
        q0.spread(2, 26, cvtQ(1, range(48))); q0.spread(4, 20, cvtQL(1))
    else:
        q0.spread(2, 30, norm_main(True)); fin_left(q0, 0, 2, 20)
    q1 = stepQ(item, 1, S0, SL)
    q1.spread(-3, 20, [f"s_mov_b32 s{sOQ}, {io+2*SLOT}"] + dma(t0 + 6, SV, sOQ, kvp))
    q0.spread(26, 30, maxn(vCM, range(sp, sp + 16), True))
    q1.spread(2, 27, maxn(vCM, range(sp + 16, sp + 32), False) + upd_main(True) + expn(range(sp, sp + 32), vMC, vL) + pack(PT, sp, 16))
    left_soft(q1, SL2, 0, item, True, 3, 16)
    q1.spread(27, 30, maxn(vCM, range(S0, S0 + 16), True))
    out += [q0, q1]
    def pfill(p):
        p.spread(2, 15, maxn(vCM, range(S0 + 16, S0 + 32), False) + upd_main(False) + expn(range(S0, S0 + 6), vMC, vL))
        p.spread(15, 30, expn(range(S0 + 6, S0 + 16), vMC, vL) + pack(PT, S0, 8))
        left_soft(p, SL, 256, item, False, 4, 24)
    p0 = stepP(item, 0, None); pfill(p0)
    p0.spread(-3, 20, [f"s_mov_b32 s{sOP}, {io+4*SLOT}"] + dma(t0 + 7, SK, sOP, kvp))
    p0.spread(20, 24, setsrd(SDQ, SV) + setsrd(SDP, SK) + [f"s_mov_b32 s{sC}, 1"])
    out.append(p0)
    for c in range(1, 7):
        sfx = f"{item}_{c}" if unroll else f"{item}"
        q = stepQ(item, c + 1, S0, SL); q.label = f"LI{item}"
        if c > 1: q.tail = [f"s_add_u32 s{sC}, s{sC}, 1", f"s_cmp_lg_u32 s{sC}, 7", f"s_cbranch_scc1 LI{item}"]
        nk, nv = (SK, SV) if item == 0 else (SO, SO)
        o = [196608, 196608 + SLOT, 196608, 196608 + 2 * SLOT] if item == 0 else [wo_off(i) for i in range(4)]
        blk = [f"s_add_u32 s{sOQ}, s{sOQ}, {SLOT}", f"s_add_u32 s{sOP}, s{sOP}, {SLOT}",
               guarded(4, f"G4{sfx}", setsrd(SDP, SV) + [f"s_mov_b32 s{sOP}, {io+7*SLOT}"]),
               guarded(5, f"G5{sfx}", setsrd(SDQ, nk) + setsrd(SDP, nk) + [f"s_mov_b32 s{sOQ}, {o[0]}", f"s_mov_b32 s{sOP}, {o[1]}"] +
                       ([f"v_accvgpr_read_b32 v{DV+k}, a{aKV+k}" for k in range(6)] if item else [])),
               guarded(6, f"G6{sfx}", setsrd(SDQ, nv) + [f"s_mov_b32 s{sOQ}, {o[2]}", f"s_mov_b32 s{sOP}, {o[3]}"])]
        q.spread(-4, -2, blk)
        q.spread(-1, 20, dma(t0 + 2 * c + 6, SDQ, sOQ, kvp))
        q.spread(0, 15, expn(range(S0 + 16, S0 + 32), vMC, vL) + pack(PT + 8, S0 + 16, 8))
        q.spread(15, 21, ol_scale())
        q.spread(24, 30, maxn(vCM, range(S0, S0 + 16), True))
        p = stepP(item, c, sfx); pfill(p)
        p.spread(-3, 20, dma(t0 + 2 * c + 7, SDP, sOP, kvp))
        out += [q, p]
    p7 = stepP(item, 7, f"{item}_7"); p7.label = f"LX{item}"
    p7.tail = [f"s_add_u32 s{sC}, s{sC}, 1", f"s_cmp_lg_u32 s{sC}, 7", f"s_cbranch_scc1 LI{item}"]
    if item == 0: p7.spread(-3, 20, [f"s_mov_b32 s{sOQ}, {196608+SLOT}"] + dma(t0 + 20, SV, sOQ, kvp))
    else: p7.spread(-3, 20, [f"s_mov_b32 s{sOQ}, {wo_off(4)}"] + dma(t0 + 20, SO, sOQ, P["wo"]))
    p7.spread(0, 12, expn(range(S0 + 16, S0 + 32), vMC, vL) + pack(PT + 8, S0 + 16, 8))
    p7.spread(4, 12, ol_scale())
    p7.spread(14, 24, xred("v_add_f32", vLL, TM + 3, [16, 32]) + [f"ds_write_b32 v{XW}, v{vLL} offset:512"] +
              xred("v_add_f32", vL, TM, [32]) + [f"v_rcp_f32 v{vAL}, v{vL}"])
    out.append(p7)
    return out

OA, OAL, PK = 96, 160, 168
def stepO(m):
    ch, k4 = divmod(m, 4); hd = k4 >> 1
    st = Step(f"O{m}", [62 + m])
    st.pre = adv() + addr(WA, KM, [128, 32, 160, 64, 192, 96, 224]) + addr(WL, KL, [])
    mj = []; l = []
    for tile in range(4):
        for s in range(6):
            b = st.fm(); cc = R("v", OA + 16 * tile, 16); S = 6 * (k4 & 1) + s
            mj.append(([tr(b + 2 * jj, WA + 2 * tile + jj, 4096 * s + 2048 * jj) for jj in (0, 1)],
                       f"{BIG} {cc}, a[{b}:{b+3}], {'av'[hd]}[{4*S}:{4*S+3}], {cc if (s or k4) else 0}", b))
    for t2 in range(2):
        for u in range(3):
            b = st.fl(); cc = R("v", OAL + 4 * t2, 4); U = 3 * (k4 & 1) + u; q = aQL + 24 * hd + 4 * U; rd = []
            if ch == 0 and t2 == 0: rd = [b128(q, RR + (U & 1) * (XT - RR), 6144 * hd + 128 * (U >> 1))]
            l.append((rd + [tr(b + 2 * jj, WL, 8192 * u + 1024 * jj + 8 * t2) for jj in (0, 1)],
                      f"{SML} {cc}, a[{b}:{b+3}], a[{q}:{q+3}], {cc if (u or k4) else 0}", b))
    st.jobs = merge(mj, l, PAT_STD)
    n = m + 5
    it = [f"s_add_u32 s{sOQ}, s{sCH}, {wo_off(n) - 256 * ch}"]
    it += [f"s_cmp_ge_u32 s{sCH}, {256 * (4 if k4 < 3 else 3)}", f"s_cselect_b32 s{sOQ}, 0x10000000, s{sOQ}"]
    st.spread(-3, 20, it + dma(62 + n, SO, sOQ, P["wo"]))
    def stores(tile, x):
        o = pack(x, OA + 16 * tile, 8)
        for hh in (0, 1): o.append(lambda hh=hh: e(f"buffer_store_dwordx4 v[{x+4*hh}:{x+4*hh+3}], v{vST}, {srd(SP)}, s{sST} offen offset:{(2*(tile&1)+hh)*1024} {P['st']}".strip(), f"st{m}"))
        return o
    def last():
        return (stores(3, PK + 8) + pack(PK + 16, OAL, 4) +
                [lambda: e(f"buffer_store_dwordx4 v[{PK+16}:{PK+19}], v{vST+1}, {srd(SP)}, s{sST} offen {P['st']}".strip(), f"st{m}"),
                 f"s_add_u32 s{sST}, s{sST}, {36*1024-4096}"])
    if k4 == 3:
        st.spread(9, 14, stores(0, PK)); st.spread(17, 22, stores(1, PK + 8) + [f"s_add_u32 s{sST}, s{sST}, 4096"])
        st.spread(24, 29, stores(2, PK)); st.spread(22, 23, [f"s_add_u32 s{sCH}, s{sCH}, 256"])
    if k4 == 0 and ch: st.spread(1, 4, last()[10:14]); st.spread(4, 12, last()[:10] + last()[14:])
    if P["fuse"] and k4 == 3 and ch:
        sf = f"{m}" if P["stop"] else ""
        st.prebar = [guarded(1024, "GS1" + sf, [lambda: e(f"s_waitcnt vmcnt({g.vm_n([f'st{m-3}'])})")], sCH)]
        st.postbar = [f"s_add_u32 s{sT}, s{sCH}, s{sW}", guarded(1024, "GS2" + sf, ["s_mov_b64 exec, 1", f"v_mov_b32 v{TM}, 1",
                      f"buffer_atomic_add v{TM}, off, {srd(SX)}, s{sGI} sc1", "s_mov_b64 exec, -1"], sT)]
    st.last = last
    return st

def prologue():
    e("s_cmp_ge_u32 s2, 256"); e("s_cbranch_scc1 K1END")
    stamp("rstart", True); stamp("start")
    e("s_and_b32 s3, s2, 4"); e("s_mul_i32 s3, s3, 10")
    e("s_add_u32 s60, s0, s3"); e("s_addc_u32 s61, s1, 0")
    e("s_load_dwordx4 s[64:67], s[60:61], 0"); e("s_load_dwordx4 s[68:71], s[60:61], 16")
    e("s_load_dwordx2 s[72:73], s[60:61], 32"); e("s_load_dwordx2 s[74:75], s[0:1], 96"); e("s_load_dwordx4 s[96:99], s[0:1], 80")
    L.val["v0"] = np.arange(256)
    if P["pref"]:
        e("s_getpc_b64 s[62:63]"); e("v_lshlrev_b32 v16, 4, v0")
        for i in range(P["pref"]):
            e(f"global_load_dwordx4 v[252:255], v16, s[62:63]", "pf"); e("v_add_u32 v16, 0x1000, v16")
    e("v_lshrrev_b32 v1, 6, v0"); e(f"v_readfirstlane_b32 s{sW}, v1")
    tab = sum(f(2 * i) << (3 * i) for i in range(8))
    e(f"s_mov_b32 s{sTAB}, {hex(tab)}"); L.val[f"s{sTAB}"] = np.full(256, tab)
    e("s_lshr_b32 s57, s2, 3"); e("s_and_b32 s58, s57, 7"); e("s_lshr_b32 s57, s57, 3")
    e("s_and_b32 s59, s2, 3"); e("s_lshl_b32 s59, s59, 2"); e("s_add_u32 s59, s59, s57")
    e(f"s_mul_i32 s{sW6}, s{sW}, 6144")
    o = L.op
    def ff(d, row): o("v_bfe_u32", d, row, 1, 3); o("v_mul_u32_u24", d, 3, d); o("v_bfe_u32", d, f"s{sTAB}", d, 3)
    o("v_and_b32", "v2", 63, "v0"); o("v_lshrrev_b32", "v1", 6, "v0")
    for k in range(2):
        o("v_lshrrev_b32", "v3", 3, "v2"); o("v_mad_u32_u24", "v3", "v1", 48, "v3"); o("v_add_u32", "v3", 8 * k, "v3")
        ff("v4", "v3"); o("v_and_b32", "v5", 7, "v2"); o("v_xor_b32", "v4", "v4", "v5")
        o("v_mul_u32_u24", "v3", 1280, "v3"); o("v_lshl_add_u32", f"v{XVR[k]}", "v4", 4, "v3")
    for k in range(6):
        if k >= 2: o("v_add_u32", f"v{XVR[k]}", 20480 * (k >> 1), f"v{XVR[k&1]}")
        L.check(f"v{XVR[k]}", lambda w, l: (48 * w + 8 * k + (l >> 3)) * 1280 + 16 * ((l & 7) ^ f(48 * w + 8 * k + (l >> 3))))
    o("v_mul_u32_u24", "v6", 384, "v1"); o("v_add_u32", "v6", "v6", "v2")
    for k in range(6):
        o("v_add_u32", "v3", 64 * k, "v6"); o("v_mul_u32_u24", "v4", 2731, "v3"); o("v_lshrrev_b32", "v4", 16, "v4")
        o("v_mul_u32_u24", "v5", 24, "v4"); o("v_sub_u32", "v3", "v3", "v5"); ff("v5", "v4"); o("v_xor_b32", "v3", "v3", "v5")
        o("v_mul_u32_u24", "v5", 12288, "v4"); o("v_lshl_add_u32", f"v{DV+k}", "v3", 4, "v5")
        o("v_mul_u32_u24", "v5", 384, "v4"); o("v_lshl_add_u32", f"v{10+k}", "v3", 4, "v5")
        U = lambda w, l: 64 * (6 * w + k) + l
        L.check(f"v{DV+k}", lambda w, l: U(w, l) // 24 * 12288 + 16 * ((U(w, l) % 24) ^ f(U(w, l) // 24)))
        L.check(f"v{10+k}", lambda w, l: U(w, l) // 24 * 384 + 16 * ((U(w, l) % 24) ^ f(U(w, l) // 24)))
    e("s_waitcnt lgkmcnt(0)")
    def mk(d, lo, mul_reg, mul, size):
        e(f"s_mul_i32 s3, s{mul_reg}, {mul}"); e(f"s_add_u32 s{d}, s{lo}, s3"); e(f"s_addc_u32 s{d+1}, s{lo+1}, 0")
        e(f"s_mov_b32 s{d+2}, {size}"); e(f"s_mov_b32 s{d+3}, 0x20000")
    mk(SX, 64, 58, 184320, 184320); mk(SW, 70, 59, 768, 7864320); e(f"s_sub_u32 s{SW+2}, s{SW+2}, s3")
    e(f"s_mov_b32 s{sOX}, 0"); e(f"s_mov_b32 s{sOQ}, 0"); e(f"s_mov_b32 s{sOP}, 384")
    for it in dma_x(0, sW6) + dma(1, SW, sOQ, P["wq"], base=sW6, add=SLOT): do(it)
    late = dma(2, SW, sOP, P["wq"], base=sW6, add=2 * SLOT) + [f"s_mov_b32 s{sOX}, 128", f"s_mov_b32 s{sOQ}, {64*12288}"]
    late += dma_x(3, sW6, add=3 * SLOT) + dma(4, SW, sOQ, P["wq"], base=sW6, add=4 * SLOT)
    m0_ = len(g.ins)
    e("s_lshl_b32 s76, s58, 4"); e("s_add_u32 s76, s76, s59"); e("s_lshl_b32 s77, s76, 1")
    mk(SK, 66, 77, 196608, 393216); mk(SV, 68, 77, 196608, 393216); mk(SO, 72, 59, 491520, 491520)
    e("s_and_b32 s3, s2, 4"); e("s_lshl_b32 s3, s3, 5"); e("s_add_u32 s76, s76, s3"); mk(SP, 74, 76, 184320, 184320)
    for d in (SDQ, SDP):
        for x in setsrd(d, SK): e(x)
        e(f"s_mov_b32 s{d+3}, 0x20000")
    e(f"s_mov_b32 s{sCS}, {fb(CS)}"); e(f"s_mov_b32 s{sTH}, {fb(P['T'] / CS)}"); e(f"s_mov_b32 s{sQB}, {3*SLOT}")
    e("s_mov_b64 vcc, 0"); e(f"s_mov_b32 s{sC}, 0"); e(f"s_mov_b32 s{sCH}, 0"); e(f"s_mov_b32 s{sST}, 0")
    for k in range(6): e(f"v_accvgpr_write_b32 a{aKV+k}, v{10+k}")
    o("v_bfe_u32", "v3", "v2", 2, 2); o("v_and_b32", "v4", 3, "v2"); o("v_lshrrev_b32", "v5", 5, "v2")
    o("v_bfe_u32", "v6", "v2", 4, 1); o("v_lshrrev_b32", "v7", 4, "v2"); o("v_and_b32", "v8", 2, "v3"); o("v_lshlrev_b32", "v8", 1, "v8")
    o("v_and_b32", "v9", 15, "v2"); o("v_and_b32", "v10", 31, "v2")
    def fld(l): return (l >> 2) & 3, l & 3, l >> 5, (l >> 4) & 1, l >> 4
    def base(d, row, stride, unit, sub, add=0):
        o("v_mul_u32_u24", d, stride, row); o("v_lshl_add_u32", d, unit, 4, d)
        if sub: o("v_lshl_add_u32", d, sub, 3, d)
        if add: o("v_add_u32", d, add, d)
    o("v_and_b32", "v11", 1, "v4"); o("v_lshrrev_b32", "v12", 1, "v4")
    o("v_lshl_add_u32", "v13", "v5", 3, "v3"); o("v_lshl_add_u32", "v14", "v6", 1, "v11"); o("v_lshl_or_b32", "v15", "v5", 1, "v8")
    o("v_xor_b32", "v14", "v14", "v15"); base(f"v{WMB}", "v13", 384, "v14", "v12")
    def wm(w, l): r, c, h, hf, kg = fld(l); cp = ((c & 1) << 1) | (c >> 1); return (8*h+r)*384 + ((2*hf+(cp >> 1)) ^ f(8*h+r))*16 + 8*(cp & 1)
    L.check(f"v{WMB}", wm)
    o("v_lshl_add_u32", "v13", "v7", 3, "v3"); o("v_lshl_add_u32", "v14", "v1", 1, "v12"); o("v_lshl_or_b32", "v15", "v6", 1, "v8")
    o("v_xor_b32", "v14", "v14", "v15"); base(f"v{VL}", "v13", 384, "v14", "v11")
    def vl(w, l): r, c, h, hf, kg = fld(l); return (8*kg+r)*384 + ((2*w+(c >> 1)) ^ f(8*kg+r))*16 + 8*(c & 1)
    L.check(f"v{VL}", vl)
    o("v_lshl_add_u32", "v14", "v1", 2, "v4"); o("v_lshlrev_b32", "v15", 1, "v3"); o("v_lshl_or_b32", "v15", "v6", 3, "v15")
    o("v_xor_b32", "v14", "v14", "v15"); base("v17", "v13", 256, "v14", None)
    def ol(w, l): r, c, h, hf, kg = fld(l); return (8*kg+r)*256 + ((4*w+c) ^ fo(8*kg+r))*16
    L.check("v17", ol); e(f"v_accvgpr_write_b32 a{aST+1}, v17")
    o("v_lshl_add_u32", "v13", "v5", 2, "v3"); o("v_lshl_add_u32", "v14", "v6", 1, "v12"); o("v_mul_u32_u24", "v15", 3, "v5")
    o("v_or_b32", "v15", "v15", "v8"); o("v_xor_b32", "v14", "v14", "v15"); base(f"v{VM_}", "v13", 384, "v14", "v11")
    def vm(w, l): r, c, h, hf, kg = fld(l); return (4*h+r)*384 + ((2*hf+(c >> 1)) ^ f(4*h+r))*16 + 8*(c & 1)
    L.check(f"v{VM_}", vm)
    o("v_lshl_add_u32", "v14", "v11", 3, "v6"); o("v_lshlrev_b32", "v15", 1, "v3"); o("v_xor_b32", "v14", "v14", "v15")
    base("v17", "v13", 256, "v14", "v12")
    def om(w, l): r, c, h, hf, kg = fld(l); return (4*h+r)*256 + ((8*(c & 1)+hf) ^ fo(4*h+r))*16 + 8*(c >> 1)
    L.check("v17", om); e(f"v_accvgpr_write_b32 a{aST}, v17")
    ff("v14", "v10"); o("v_xor_b32", "v14", "v14", "v5"); base(f"v{KM}", "v10", 384, "v14", None)
    L.check(f"v{KM}", lambda w, l: (l & 31) * 384 + ((l >> 5) ^ f(l & 31)) * 16)
    o("v_lshl_add_u32", "v13", "v1", 5, "v10"); base(f"v{TM+8}", "v13", 128, "v14", None)
    L.check(f"v{TM+8}", lambda w, l: (32 * w + (l & 31)) * 128 + ((l >> 5) ^ f(32 * w + (l & 31))) * 16)
    ff("v15", "v9"); o("v_xor_b32", "v14", "v15", "v7")
    o("v_lshl_add_u32", "v13", "v1", 4, "v9"); base(f"v{KL}", "v13", 384, "v14", None)
    L.check(f"v{KL}", lambda w, l: (16 * w + (l & 15)) * 384 + ((l >> 4) ^ f(16 * w + (l & 15))) * 16)
    base(f"v{TM+9}", "v9", 128, "v14", None, 128 * 128); base(f"v{RR}", "v9", 384, "v14", None, RA); base(f"v{PR}", "v9", 128, "v14", None, RA)
    L.check(f"v{TM+9}", lambda w, l: (128 + (l & 15)) * 128 + ((l >> 4) ^ f(128 + (l & 15))) * 16)
    o("v_lshl_add_u32", "v14", "v1", 1, "v5"); o("v_xor_b32", "v14", "v14", "v15")
    base(f"v{RW}", "v9", 384, "v14", "v6", RA); base(f"v{PW}", "v9", 128, "v14", "v6", RA)
    L.check(f"v{RW}", lambda w, l: RA + (l & 15) * 384 + ((2 * w + (l >> 5)) ^ f(l & 15)) * 16 + 8 * ((l >> 4) & 1))
    o("v_lshlrev_b32", f"v{XR}", 4, "v9"); o("v_add_u32", f"v{XR}", XB, f"v{XR}"); o("v_lshl_add_u32", f"v{XW}", "v1", 2, f"v{XR}")
    o("v_lshlrev_b32", "v13", 4, "v2"); o("v_lshl_add_u32", f"v{vST}", "v1", 13, "v13"); o("v_lshl_add_u32", "v13", "v1", 10, "v13")
    o("v_add_u32", f"v{vST+1}", 32768 - 4096, "v13")
    for k in range(6):
        o("v_mad_u32_u24", "v13", "v1", 24, "v7"); o("v_add_u32", "v13", 4 * k, "v13"); o("v_and_b32", "v14", 8, "v13")
        o("v_lshl_or_b32", "v14", "v7", 1, "v14"); o("v_xor_b32", "v14", "v14", "v9"); base("v17", "v13", 1280, "v14", None)
        L.check("v17", lambda w, l: (24*w+4*k+(l >> 4)) * 1280 + 16 * ((l & 15) ^ fo(24*w+4*k+(l >> 4))))
        e(f"v_accvgpr_write_b32 a{aPL+k}, v17")
    z = f"a[{aXF}:{aXF+3}]"
    rest = g.ins[m0_:]; del g.ins[m0_:]
    for i in range(4): e(f"v_accvgpr_write_b32 a{aXF+i}, 0")
    zs = [f"{BIG} v[{16*i}:{16*i+15}], {z}, {z}, 0" for i in range(2, 12)] + [f"{SML} a[{aLA+4*i}:{aLA+4*i+3}], {z}, {z}, 0" for i in range(6)]
    n = len(late) // 2 + 1
    for i in range(n):
        for it in late[2 * i:2 * i + 2]: do(it)
        if zs: e(zs.pop(0))
        g.ins += rest[i * len(rest) // n:(i + 1) * len(rest) // n]
    for i in range(2): e(f"{BIG} v[{16*i}:{16*i+15}], {z}, {z}, 0")

def build():
    unroll = P["stop"] is not None
    prologue()
    ps = stepW(0, 1); ps.fill = {}; ps.jobs = ps.jobs[-(D - E):]; ps.name = "pseudo"
    for j in ps.jobs:
        for r in parse(j[1]).r: e(f"v_accvgpr_write_b32 {r}, 0")
    steps = [ps]
    for T in range(10):
        a, b = stepW(T, 0), stepW(T, 1)
        a.label = "LQ"
        lt = [f"s_add_u32 s{sC}, s{sC}, 1", f"s_cmp_lg_u32 s{sC}, 10", "s_cbranch_scc1 LQ"]
        if T: a.tail = lt
        steps += [a, b]
    i0 = item_steps(0, unroll); i0[0].tail = lt; i0[0].label = "LQX"
    steps += i0 + item_steps(1, unroll)
    steps[-1].spread(20, 22, [f"v_accvgpr_read_b32 v{KM}, a{aST}", f"v_accvgpr_read_b32 v{KL}, a{aST+1}"])
    os_ = [stepO(m) for m in range(20)]
    os_[0].pre.append(f"v_xor_b32 v{XT}, 64, v{RR}")
    nm = norm_main(False); os_[0].spread(2, 30, nm[:72]); os_[1].spread(0, 29, nm[72:]); fin_left(os_[0], 1, 2, 22)
    for m in (4, 8, 12, 16):
        os_[m].label = "LO"
        if m > 4: os_[m].tail = [f"s_cmp_lg_u32 s{sCH}, {5*256}", "s_cbranch_scc1 LO"]
    fin = Step("OX", []); fin.pre = os_[4].pre; fin.tail = os_[8].tail; fin.label = "LOX"
    if P["fuse"]:
        os_[2].spread(2, 12, [f"s_mov_b32 s{SX}, s98", f"s_mov_b32 s{SX+1}, s99", f"s_mov_b32 s{SX+2}, 256", f"s_and_b32 s{sGI}, s76, 0xf0",
                              f"s_mov_b32 s{SK}, s96", f"s_mov_b32 s{SK+1}, s97", f"s_mov_b32 s{SK+2}, {8*144*1280*2}",
                              f"s_mul_i32 s3, s{sGI}, 184320", f"s_add_u32 s{SW}, s74, s3", f"s_addc_u32 s{SW+1}, s75, 0", f"s_mov_b32 s{SW+2}, {16*184320}",
                              f"s_mul_i32 s{sOB}, s58, 368640", "s_lshr_b32 s3, s76, 7", "s_mul_i32 s3, s3, 1280", f"s_add_u32 s{sOB}, s{sOB}, s3",
                              f"s_mov_b32 s{sLO}, 0x3f80", f"s_mov_b32 s{sHI}, 0x3f800000"])
    steps += os_ + [fin]
    if run(steps): dump()
    else:
        for it in os_[0].last(): do(it)
        if P["fuse"]: reduce_tail()
        if P["prof"]: prof_out()
    e("s_waitcnt vmcnt(0)"); e("K1END:"); e("s_endpgm")
    for lab in rare:
        if not any(i.t == f"RET{lab}:" for i in g.ins): continue
        e(f"RARE{lab}:"); e("s_nop 7"); e("s_nop 7")
        for i in range(96): e(f"v_mul_f32 v{i}, v{i}, v{vAL}")
        e("s_nop 1"); e(f"s_branch RET{lab}")
    t = fold([i.t for i in pad_hazards(g.ins)]); main = []; out = []; cur = main
    for x in t:
        if re.fullmatch(r"XG\w+:", x): cur = out
        if re.fullmatch(r"YG\w+:", x): out.append(f"s_branch {x[:-1]}"); cur = main
        cur.append(x)
    return main + out
def reduce_tail():
    vA, vB, vD, vP, vQ, vX = 140, 141, 142, 143, 144, 145
    dbg = lambda op, v, off, pol: f"{op} v{v}, off, {srd(SX)}, s{sGI} offset:{off} {pol}"
    e(f"s_cmp_eq_u32 s{sW}, 0"); e(f"s_cselect_b32 s{sGI}, s{sGI}, 0x10000")
    e(dbg("buffer_load_dword", vP, 0, "sc1"))
    e("v_mbcnt_lo_u32_b32 v0, -1, 0"); e("v_mbcnt_hi_u32_b32 v0, -1, v0")
    e("v_and_b32 v2, 7, v0"); e("v_lshrrev_b32 v1, 3, v0"); e("v_lshlrev_b32 v3, 4, v2")
    e(f"v_lshl_add_u32 v{vA}, v1, 10, v3"); e(f"v_mul_u32_u24 v{vD}, 2560, v2"); e(f"v_lshl_add_u32 v{vD}, v1, 4, v{vD}")
    e(f"v_lshl_add_u32 v{vB}, v1, 8, v3"); e(f"v_mov_b32 v{vX}, {XB}"); e(f"s_mov_b32 s{sTODO}, 0")
    e("s_waitcnt vmcnt(0)"); e("s_barrier"); stamp("drain")
    def wait(tag, sh, first):
        e(f"s_cmp_lg_u32 s{sW}, 0"); e(f"s_cbranch_scc1 RW{tag}")
        if first:
            e("s_mov_b64 exec, 1"); e(f"v_mov_b32 v{vQ}, 0x100"); e(dbg("buffer_atomic_add", vQ, 0, "sc0 sc1")); e("s_mov_b64 exec, -1")
        e(f"s_mov_b32 s{sN}, 0x4000")
        e(f"RP{tag}:"); e(f"v_readfirstlane_b32 s3, v{vP}"); e(f"s_bfe_u32 s3, s3, {hex(0x80000 | sh)}"); e("s_cmp_eq_u32 s3, 16")
        e(f"s_cbranch_scc1 RG{tag}")
        e(f"s_cmp_eq_u32 s{sN}, 0"); e(f"s_cbranch_scc1 RX{tag}")
        e(f"s_sub_u32 s{sN}, s{sN}, 1"); e(f"s_cmp_lg_u32 s{sN}, 0"); e(f"s_cbranch_scc1 RL{tag}")
        e("s_mov_b64 exec, 1"); e(f"s_lshl_b32 s3, 1, s{sHP}"); e("v_mov_b32 v4, s3"); e(dbg("buffer_atomic_or", 4, 4, "sc0 sc1"))
        e("s_mov_b64 exec, -1"); e("s_waitcnt vmcnt(0)")
        e(f"RL{tag}:"); e(dbg("buffer_load_dword", vP, 0, "sc1")); e("s_waitcnt vmcnt(0)"); e(f"s_branch RP{tag}")
        e(f"RX{tag}:"); e("v_mov_b32 v4, 0"); e(f"s_branch RS{tag}")
        e(f"RG{tag}:"); e("v_mov_b32 v4, 1")
        if not first:
            e(f"v_readfirstlane_b32 s3, v{vQ}"); e("s_lshr_b32 s3, s3, 8"); e("s_cmp_eq_u32 s3, 15"); e("s_cselect_b32 s3, 3, 1"); e("v_mov_b32 v4, s3")
        e(f"RS{tag}:"); e(f"ds_write_b32 v{vX}, v4 offset:{sh}"); e("s_waitcnt lgkmcnt(0)")
        e(f"RW{tag}:"); e("s_barrier"); e(f"ds_read_b32 v4, v{vX} offset:{sh}"); e("s_waitcnt lgkmcnt(0)"); e(f"v_readfirstlane_b32 s{sN}, v4")
        e(f"s_cmp_eq_u32 s{sN}, 0"); e("s_cbranch_scc1 K1END")
    def loads(j, r, d):
        e(f"s_lshl_b32 s3, s{sHP}, 2"); e(f"s_add_u32 s3, s3, s{sW}"); e(f"s_add_u32 s3, s3, {64*j}")
        e("s_mul_i32 s67, s3, 1821"); e("s_lshr_b32 s67, s67, 16"); e("s_mul_i32 s68, s67, 36"); e("s_sub_u32 s68, s3, s68")
        e("s_cmp_lt_u32 s68, 32"); e("s_cselect_b64 vcc, -1, 0"); e(f"v_cndmask_b32 v{148+j}, v{vB}, v{vA}, vcc")
        e("s_cselect_b32 s69, 2, 1"); e("s_cselect_b32 s70, 3, 1"); e("s_cselect_b32 s71, 9, 11")
        e("s_lshr_b32 s72, s68, s69"); e("s_and_b32 s72, s72, 1"); e("s_and_b32 s70, s68, s70"); e("s_lshr_b32 s68, s68, 3")
        e(f"s_mul_i32 s{sS}, s67, 36864"); e("s_lshl_b32 s69, s68, 13"); e(f"s_add_u32 s{sS}, s{sS}, s69"); e("s_lshl_b32 s69, s72, s71")
        e(f"s_add_u32 s{sS}, s{sS}, s69"); e("s_lshl_b32 s69, s70, 7"); e(f"s_add_u32 s{sS}, s{sS}, s69")
        e("s_lshl_b32 s68, s68, 2"); e("s_add_u32 s68, s68, s70"); e(f"s_mul_i32 s{d}, s68, {8*2560}"); e(f"s_add_u32 s{d}, s{d}, s{sOB}")
        e("s_lshl_b32 s67, s67, 1"); e("s_add_u32 s67, s67, s72"); e("s_lshl_b32 s67, s67, 7"); e(f"s_add_u32 s{d}, s{d}, s67")
        if j == 2: e("s_cmp_lt_u32 s3, 180"); e(f"s_cselect_b32 s{sS}, s{sS}, 0x10000000"); e(f"s_cselect_b32 s{d}, s{d}, 0x10000000")
        for i in range(16):
            e(f"buffer_load_dwordx4 v[{r+4*i}:{r+4*i+3}], v{148+j}, {srd(SW)}, s{sS} offen {P['rp']}".strip(), f"r{j}_{i}")
            if i < 15: e(f"s_add_u32 s{sS}, s{sS}, 184320")
    def summ(j, r, d):
        for i in range(16):
            e(f"s_waitcnt vmcnt({g.vm_n([f'r{j}_{i}'])})")
            for q in range(4):
                x = r + 4 * i + q; a = 128 + 2 * q
                if P["dot"]:
                    e(f"v_dot2_f32_bf16 v{a}, v{x}, s{sLO}, {f'v{a}' if i else 0}"); e(f"v_dot2_f32_bf16 v{a+1}, v{x}, s{sHI}, {f'v{a+1}' if i else 0}")
                elif i == 0: e(f"v_lshlrev_b32 v{a}, 16, v{x}"); e(f"v_and_b32 v{a+1}, 0xffff0000, v{x}")
                else:
                    e(f"v_lshlrev_b32 v146, 16, v{x}"); e(f"v_and_b32 v147, 0xffff0000, v{x}"); e(f"v_pk_add_f32 v[{a}:{a+1}], v[{a}:{a+1}], v[146:147]")
        for q in range(4): e(f"v_cvt_pk_bf16_f32 v{136+q}, v{128+2*q}, v{129+2*q}")
        e(f"buffer_store_dwordx4 v[136:139], v{vD}, {srd(SK)}, s{d} offen")
    wait("1", 0, True); stamp("w1")
    e("RED:")
    loads(0, 0, sD); loads(1, 64, 73); e(dbg("buffer_load_dword", vP, 0, "sc1"), "poll")
    summ(0, 0, sD); summ(1, 64, 73); e(f"s_waitcnt vmcnt({g.vm_n(['poll'])})"); stamp("ph1")
    e(f"s_cmp_lg_u32 s{sTODO}, 0"); e("s_cbranch_scc1 RNW")
    wait("2", 8, False); stamp("w2")
    e("RNW:"); loads(2, 0, sD); summ(2, 0, sD)
    e(f"s_cmp_lg_u32 s{sTODO}, 0"); e("s_cbranch_scc1 RNX")
    e(f"s_cmp_eq_u32 s{sN}, 3"); e("s_cbranch_scc0 RDONE")
    e(f"s_and_b32 s{sGI}, s76, 0xf0"); e(dbg("buffer_load_dword", vP, 4, "sc1")); e("s_waitcnt vmcnt(0)"); e(f"v_readfirstlane_b32 s{sTODO}, v{vP}"); e(f"s_or_b32 s{sTODO}, s{sTODO}, 0x10000")
    e("RNX:"); e(f"s_ff1_i32_b32 s{sHP}, s{sTODO}"); e(f"s_cmp_eq_u32 s{sHP}, 16"); e("s_cbranch_scc1 RDONE")
    e(f"s_bitset0_b32 s{sTODO}, s{sHP}"); e("s_branch RED")
    e("RDONE:")
def dump():
    e("s_waitcnt vmcnt(0) lgkmcnt(0)"); e("s_nop 7"); e("s_nop 7"); e("s_barrier")
    e("s_cmp_ge_u32 s2, 16"); e("s_cbranch_scc1 K1END")
    e("s_add_u32 s80, s74, 0x4000000"); e("s_addc_u32 s81, s75, 0"); e("s_mov_b32 s82, 0x1000000"); e("s_mov_b32 s83, 0x20000")
    e("s_lshl_b32 s84, s2, 20"); e(f"s_lshl_b32 s85, s{sW}, 8"); e("s_add_u32 s84, s84, s85")
    e("v_mbcnt_lo_u32_b32 v255, -1, 0"); e("v_mbcnt_hi_u32_b32 v255, -1, v255"); e("v_lshlrev_b32 v255, 2, v255")
    for p in "va":
        for i in range(256):
            e(f"buffer_store_dword {p}{i}, v255, s[80:83], s84 offen"); e("s_add_u32 s84, s84, 1024")
    e("s_waitcnt vmcnt(0)"); e(f"s_lshl_b32 s85, s{sW}, 8"); e("v_add_u32 v254, s85, v255")
    for i in range(LDS // 1024):
        e(f"ds_read_b32 v1, v254"); e("v_add_u32 v254, 0x400, v254"); e("s_waitcnt lgkmcnt(0)")
        e(f"buffer_store_dword v1, v255, s[80:83], s84 offen"); e("s_add_u32 s84, s84, 1024"); e("s_waitcnt vmcnt(0)")
def fold(t):
    if P["stop"]: return [x for x in t if x[0] != "@"]
    for lab, ex in (("LQ", "LQX"), ("LI0", "LX0"), ("LI1", "LX1"), ("LO", "LOX")):
        idx = [i for i, x in enumerate(t) if x == f"@{lab}:"] + [t.index(f"@{ex}:")]
        trips = [t[a + 1:b] for a, b in zip(idx, idx[1:])]
        nz = lambda x: re.sub(r"vmcnt\(\d+\)", "vmcnt()", x)
        for k, tp in enumerate(trips):
            assert [nz(x) for x in tp] == [nz(x) for x in trips[-1]], (lab, k, [(a, b) for a, b in zip(tp, trips[-1]) if nz(a) != nz(b)][:5])
        body = []
        for col in zip(*trips):
            if "vmcnt" in col[0]: col = sorted(col, key=lambda x: int(re.search(r"vmcnt\((\d+)\)", x).group(1)))
            body.append(col[0])
        t = t[:idx[0]] + [f"{lab}:"] + body + t[idx[-1] + 1:]
    return t
def k2():
    assert all((x * 5826) >> 20 == x // 180 for x in range(2880)) and all((x * 1821) >> 16 == x // 36 for x in range(180))
    g2 = Gen(); e = g2.e
    e("s_cmp_ge_u32 s2, 720"); e("s_cbranch_scc1 K2END")
    e("s_load_dwordx2 s[4:5], s[0:1], 96"); e("s_load_dwordx2 s[6:7], s[0:1], 80")
    e("v_lshrrev_b32 v1, 6, v0"); e("v_readfirstlane_b32 s3, v1"); e("v_and_b32 v0, 63, v0")
    e("s_lshl_b32 s16, s2, 2"); e("s_add_u32 s16, s16, s3")
    e("s_mul_i32 s17, s16, 5826"); e("s_lshr_b32 s17, s17, 20"); e("s_mul_i32 s18, s17, 180"); e("s_sub_u32 s18, s16, s18")
    e("s_mul_i32 s19, s18, 1821"); e("s_lshr_b32 s19, s19, 16"); e("s_mul_i32 s20, s19, 36"); e("s_sub_u32 s20, s18, s20")
    e("s_lshl_b32 s21, s18, 10"); e("v_lshlrev_b32 v1, 4, v0"); e("v_add_u32 v1, s21, v1")
    e(f"s_mul_i32 s22, s17, {16*184320}"); e("s_waitcnt lgkmcnt(0)")
    e("s_add_u32 s8, s4, s22"); e("s_addc_u32 s9, s5, 0"); e(f"s_mov_b32 s10, {16*184320}"); e("s_mov_b32 s11, 0x20000")
    e("s_mov_b32 s12, s6"); e("s_mov_b32 s13, s7"); e(f"s_mov_b32 s14, {8*144*1280*2}"); e("s_mov_b32 s15, 0x20000")
    e("s_mov_b32 s23, 0")
    for i in range(16):
        e(f"buffer_load_dwordx4 v[{8+4*i}:{11+4*i}], v1, s[8:11], s23 offen {P.get('k2', '')}".strip()); e("s_add_u32 s23, s23, 184320")
    e("s_and_b32 s24, s17, 7"); e("s_mul_i32 s24, s24, 368640"); e("s_lshr_b32 s25, s17, 3"); e("s_mul_i32 s25, s25, 1280")
    e("s_add_u32 s24, s24, s25"); e("s_lshl_b32 s25, s19, 8"); e("s_add_u32 s24, s24, s25")
    e("s_cmp_ge_u32 s20, 32"); e("s_cbranch_scc1 K2L")
    e("s_lshr_b32 s25, s20, 3"); e("s_mul_i32 s25, s25, 81920"); e("s_add_u32 s24, s24, s25")
    e("s_and_b32 s25, s20, 7"); e("s_lshl_b32 s25, s25, 4"); e("s_add_u32 s24, s24, s25")
    e("v_and_b32 v2, 31, v0"); e("v_mul_u32_u24 v2, 2560, v2"); e("v_lshrrev_b32 v3, 5, v0"); e("v_lshl_add_u32 v2, v3, 7, v2")
    e("s_branch K2S"); e("K2L:")
    e("s_sub_u32 s25, s20, 32"); e("s_lshl_b32 s25, s25, 6"); e("s_add_u32 s24, s24, s25"); e(f"s_add_u32 s24, s24, {128*2560}")
    e("v_and_b32 v2, 15, v0"); e("v_mul_u32_u24 v2, 2560, v2"); e("v_lshrrev_b32 v3, 4, v0"); e("v_lshl_add_u32 v2, v3, 4, v2")
    e("K2S:"); e("s_mov_b32 s26, 0xffff0000")
    for i in range(16):
        e(f"s_waitcnt vmcnt({15-i})")
        for j in range(4):
            r = 8 + 4 * i + j
            if i == 0: e(f"v_lshlrev_b32 v{72+2*j}, 16, v{r}"); e(f"v_and_b32 v{73+2*j}, s26, v{r}")
            else:
                e(f"v_lshlrev_b32 v4, 16, v{r}"); e(f"v_and_b32 v5, s26, v{r}")
                e(f"v_add_f32 v{72+2*j}, v{72+2*j}, v4"); e(f"v_add_f32 v{73+2*j}, v{73+2*j}, v5")
    for j in range(4): e(f"v_cvt_pk_bf16_f32 v{4+j}, v{72+2*j}, v{73+2*j}")
    e("buffer_store_dwordx4 v[4:7], v2, s[12:15], s24 offen"); e("s_waitcnt vmcnt(0)"); e("K2END:"); e("s_endpgm")
    return [i.t for i in pad_hazards(g2.ins)]
def kern(name, body):
    return f".globl {name}\n.p2align 8\n.type {name},@function\n{name}:\n" + "".join((x if x.endswith(":") else "  " + x) + "\n" for x in body)
def desc(name, nv, acc):
    return (f".p2align 6\n.amdhsa_kernel {name}\n  .amdhsa_next_free_vgpr {nv}\n  .amdhsa_next_free_sgpr 102\n  .amdhsa_accum_offset {acc}\n"
            "  .amdhsa_group_segment_fixed_size 0\n  .amdhsa_kernarg_size 104\n  .amdhsa_user_sgpr_count 2\n"
            "  .amdhsa_user_sgpr_kernarg_segment_ptr 1\n  .amdhsa_system_sgpr_workgroup_id_x 1\n.end_amdhsa_kernel\n")
b1 = build(); b2 = k2()
hdr = "".join(l for l in open(f"cdna_kernels/{NAME}.s.ref") if l.startswith(";") and "@launch" not in l and "verride" not in l and "ceil(" not in l)
if P["fuse"]: out = hdr + f"; @launch grid=(256,1,1) block=(256,1,1) lds={LDS}\n"
else: out = hdr + f"; @launch kernel={NAME}_kernel grid=(256,1,1) block=(256,1,1) lds={LDS}\n; @launch kernel=reduce_kernel grid=(720,1,1) block=(256,1,1) lds=0\n"
out += '.amdgcn_target "amdgcn-amd-amdhsa--gfx950"\n.text\n' + kern(NAME + "_kernel", b1) + ("" if P["fuse"] else kern("reduce_kernel", b2))
out += '.section .rodata,"a"\n' + desc(NAME + "_kernel", 512, 256) + ("" if P["fuse"] else desc("reduce_kernel", 80, 80))
fn = f"cdna_kernels/{NAME}.s" if P["name"] == "k" else f"cdna_kernels/{P['name']}.s"
open(fn, "w").write(out)
print(fn, "instrs", len(b1), "nops", sum(x.startswith("s_nop") for x in b1))
```
